```python
import torch

def _softmax(x, axis=-1):
    return torch.softmax(x, dim=axis)
def _gelu(x):
    return torch.nn.functional.gelu(x, approximate="tanh")
def _silu(x):
    return torch.nn.functional.silu(x)
def _sigmoid(x):
    return torch.sigmoid(x)
def _layernorm(x, axis=-1, eps=1e-5):
    m = x.mean(dim=axis, keepdim=True)
    v = x.var(dim=axis, keepdim=True, unbiased=False)
    return (x - m) / torch.sqrt(v + eps)
def _scatter_add(tgt, idx, src, axis=0):
    return tgt.clone().index_add_(axis, idx, src)
def _segment_sum(src, seg, n):
    out = torch.zeros((n,) + src.shape[1:], dtype=src.dtype)
    return out.index_add_(0, seg, src)
def _pad(x, pw):
    flat = tuple(v for pair in reversed(pw) for v in pair)
    return torch.nn.functional.pad(x, flat)

kernel_name = 'gated_mix__ssm_conv_s5__linear_attn_block__prompt'

def setup_inputs():

    _w = (lambda a: (lambda t: t.to(torch.bfloat16) if t.is_floating_point() else t)(torch.as_tensor(a)))
    def _A_setup():
        B, S, D = 1, 2048, 1024
        P = D
        Lambda_re = -0.5 * (lambda _x: torch.exp(torch.as_tensor(_x)))((lambda *s: torch.randn(*s, dtype=torch.bfloat16) * 0.4)(P))
        Lambda_im = (lambda *s: torch.randn(*s, dtype=torch.bfloat16) * 0.8)(P) * 1.0
        B_re = (lambda *s: torch.randn(*s, dtype=torch.bfloat16) * 0.4)(P, D) * (D ** -0.5)
        B_im = (lambda *s: torch.randn(*s, dtype=torch.bfloat16) * 0.4)(P, D) * (D ** -0.5)
        C_re = (lambda *s: torch.randn(*s, dtype=torch.bfloat16) * 0.4)(D, P) * (P ** -0.5)
        C_im = (lambda *s: torch.randn(*s, dtype=torch.bfloat16) * 0.4)(D, P) * (P ** -0.5)
        log_dt = (lambda *s: torch.randn(*s, dtype=torch.bfloat16) * 0.4)(P) * 0.3 - 2.0
        Dskip = (lambda *s: torch.randn(*s, dtype=torch.bfloat16) * 0.05)(D)
        return {
            "x": _w((lambda *s: torch.randn(*s, dtype=torch.bfloat16) * 0.05)(B, S, D)),
            "Lambda_re": _w(Lambda_re),
            "Lambda_im": _w(Lambda_im),
            "B_re": _w(B_re),
            "B_im": _w(B_im),
            "C_re": _w(C_re),
            "C_im": _w(C_im),
            "log_dt": _w(log_dt),
            "Dskip": _w(Dskip),
        }
    _A_in = _A_setup()

    def _B_setup():
        B, S, D = 1, 2048, 1024
        return {
            "x": _w((lambda *s: torch.randn(*s, dtype=torch.bfloat16) * 0.05)(B, S, D)),
            "wqkv": _w((lambda *s: torch.randn(*s, dtype=torch.bfloat16) * 0.8)(D, 3 * D)),
            "wo": _w((lambda *s: torch.randn(*s, dtype=torch.bfloat16) * 0.05)(D, D)),
        }
    _B_in = _B_setup()

    return {
        "A_x": _A_in["x"],
        "A_Lambda_re": _A_in["Lambda_re"],
        "A_Lambda_im": _A_in["Lambda_im"],
        "A_B_re": _A_in["B_re"],
        "A_B_im": _A_in["B_im"],
        "A_C_re": _A_in["C_re"],
        "A_C_im": _A_in["C_im"],
        "A_log_dt": _A_in["log_dt"],
        "A_Dskip": _A_in["Dskip"],
        "B_x": _B_in["x"],
        "B_wqkv": _B_in["wqkv"],
        "B_wo": _B_in["wo"],
        "gate_w": _w((lambda *s: torch.randn(*s, dtype=torch.bfloat16) * 0.05)(1024) * 16.0),
    }

def reference(A_x, A_Lambda_re, A_Lambda_im, A_B_re, A_B_im, A_C_re, A_C_im, A_log_dt, A_Dskip, B_x, B_wqkv, B_wo, gate_w):
    def _A_ref(x, Lambda_re, Lambda_im, B_re, B_im, C_re, C_im, log_dt, Dskip):
        Bsz, L, H = x.shape
        Lam = Lambda_re + 1j * Lambda_im
        Bmat = B_re + 1j * B_im
        Cmat = C_re + 1j * C_im
        dt = torch.exp(log_dt)
        Lam_bar = torch.exp(dt * Lam)
        B_bar = ((Lam_bar - 1.0) / Lam)[:, None] * Bmat
        Bu = torch.einsum("bld,pd->blp", x + 0j, B_bar)
        h = torch.zeros_like(Bu[:, 0, :])
        hs = []
        for t in range(L):
            h = Lam_bar[None, :] * h + Bu[:, t, :]
            hs.append(h)
        hseq = torch.stack(hs, 1)
        y = 2.0 * torch.einsum("blp,dp->bld", hseq, Cmat).real + x * Dskip[None, None, :]
        return y

    def _B_ref(x, wqkv, wo):
        B, S, D = x.shape
        H = 32; Dh = D // H
        qkv = (lambda x, *d: x.permute(*d))((x @ wqkv).reshape(B, S, 3, H, Dh), 2, 0, 3, 1, 4)
        q, k, v = qkv[0], qkv[1], qkv[2]
        phi = lambda t: torch.where(t > 0, t + 1, torch.exp(t)) + 1e-6
        pq, pk = phi(q), phi(k)
        kv = torch.einsum("bhsd,bhse->bhde", pk, v)
        z = torch.einsum("bhsd->bhd", pk)
        num = torch.einsum("bhqd,bhde->bhqe", pq, kv)
        den = torch.einsum("bhqd,bhd->bhq", pq, z)[..., None] + 1e-6
        o = num / den
        return (lambda x, *d: x.permute(*d))(o, 0, 2, 1, 3).reshape(B, S, D) @ wo

    x = A_x
    g = _sigmoid((x * gate_w).sum(-1, keepdims=True))
    a = _A_ref(x, A_Lambda_re, A_Lambda_im, A_B_re, A_B_im, A_C_re, A_C_im, A_log_dt, A_Dskip)
    b = _B_ref(x, B_wqkv, B_wo)
    return g * a + (1 - g) * b
```

```python
import re
HEADER = open('common.py').read().split('HEADER = """')[1].split('"""')[0]
DESIGN = """
;  Hand-offs: write-through stores, s_waitcnt, tagged flags; the tag is (epoch word in the workspace)+1, the epoch is advanced
"""
NAME = "gated_mix__ssm_conv_s5__linear_attn_block__prompt"

WS_H   = 0x0000000
WS_O   = 0x0800000
WS_G   = 0x0C00000
WS_AGG = 0x0C10000
WS_EP  = 0x0C30000
WS_HF  = 0x0C31000
WS_OF  = 0x0C35000
WS_KVF = 0x0C39000
WS_QF  = 0x0C41000
WS_KVP = 0x0C50000
KVP_HEAD = 5120
WS_RST = 0x0E00000
WS_STAMP = 0x1600000
WS_SIZE_USED = 0x1700000

class Asm:
    def __init__(self):
        self.lines = []; self.launches = []; self.kernels = []; self.nlabel = 0
        self.vm = []
        self.stamp_on = False
        self.step_stamps = False
        self.lds = []
        self.auto_lgkm = False
    @staticmethod
    def regs(tok):
        m = re.match(r"([av])\[(\d+):(\d+)\]$", tok)
        if m: return {(m.group(1), r) for r in range(int(m.group(2)), int(m.group(3)) + 1)}
        m = re.match(r"([av])(\d+)$", tok)
        if m: return {(m.group(1), int(m.group(2)))}
        return set()
    def track(self, t):
        op = t.split()[0]
        if op.startswith("ds_"):
            dst = self.regs(t.split()[1].rstrip(",")) if op.startswith("ds_read") else set()
            if self.lds is not None: self.lds.append(dst)
        elif op in ("s_memtime", "s_memrealtime") or op.startswith("s_load"):
            self.lds = None
        elif op == "s_waitcnt" and "lgkmcnt(0)" in t:
            self.lds = []
        elif op.startswith("v_mfma") and self.auto_lgkm:
            toks = [x.strip() for x in t[len(op):].split(",")]
            need = self.regs(toks[1]) | self.regs(toks[2])
            if self.lds is None:
                self.lines.append("    s_waitcnt lgkmcnt(0)"); self.lds = []
            else:
                idx = [i for i, d in enumerate(self.lds) if d & need]
                if idx:
                    n = len(self.lds) - 1 - idx[-1]
                    n = min(n, 15)
                    self.lines.append("    s_waitcnt lgkmcnt(%d)" % n)
                    self.lds = self.lds[len(self.lds) - n:] if n else []
    def __call__(self, s=""):
        if isinstance(s, tuple):
            self.lines.append("    " + s[0]); self.vm.append(s[1]); return
        for l in s.split("\n"):
            t = l.strip()
            if not t: continue
            if not t.endswith(":"): self.track(t)
            self.lines.append(t if t.endswith(":") else "    " + t)
    def v(self, text, label="x"):
        self((text, label))
    def emit(self, L):
        for l in L: self(l)
    def need(self, *labels):
        idx = [i for i, l in enumerate(self.vm) if l in labels]
        if not idx: return None
        return len(self.vm) - 1 - idx[-1]
    def wait_vm(self, *labels):
        n = self.need(*labels)
        if n is None: return
        assert n <= 63, n
        self("s_waitcnt vmcnt(%d)" % n)
        self.vm = self.vm[len(self.vm) - n:] if n else []
    def wait_all(self):
        self("s_waitcnt vmcnt(0)"); self.vm = []
    def c(self, s): self.lines.append("    ; " + s)
    def label(self, s):
        self.lines.append(s + ":")
    def newlabel(self, p="L"):
        self.nlabel += 1
        return "%s_%d" % (p, self.nlabel)
    def start_kernel(self, name):
        self.lines += [".globl %s" % name, ".p2align 8", ".type %s,@function" % name, name + ":"]
    def kd(self, name, vgpr, agpr=0, sgpr=102):
        acc = (vgpr + 3) // 4 * 4
        self.kernels.append((name, acc + agpr if agpr else vgpr, acc, sgpr))
    def fix_hazards(self):
        L = self.lines; o = []
        for i, l in enumerate(L):
            o.append(l)
            if " m0," in l and l.strip().startswith("s_") and i + 1 < len(L) and "buffer_load" in L[i + 1] and L[i + 1].rstrip().endswith("lds"):
                o.append("    s_nop 0")
        self.lines = o
    def text(self):
        self.fix_hazards()
        out = [HEADER.rstrip()] + self.launches + [DESIGN.strip("\n")]
        out += ['.amdgcn_target "amdgcn-amd-amdhsa--gfx950"', ".text"] + self.lines + ['.section .rodata,"a"']
        for (name, nfv, acc, sgpr) in self.kernels:
            out += [".p2align 6", ".amdhsa_kernel %s" % name, "  .amdhsa_next_free_vgpr %d" % nfv, "  .amdhsa_next_free_sgpr %d" % sgpr,
                    "  .amdhsa_accum_offset %d" % acc, "  .amdhsa_group_segment_fixed_size 0", "  .amdhsa_kernarg_size 128",
                    "  .amdhsa_user_sgpr_count 2", "  .amdhsa_user_sgpr_kernarg_segment_ptr 1", "  .amdhsa_system_sgpr_workgroup_id_x 1",
                    "  .amdhsa_float_denorm_mode_32 3", ".end_amdhsa_kernel"]
        return "\n".join(out) + "\n"
    def stamp(self, k, vreg=1):
        if not self.stamp_on: return
        self("s_memrealtime s[98:99]"); self("s_waitcnt lgkmcnt(0)"); self("v_writelane_b32 v%d, s98, %d" % (vreg, k))
        self("s_memtime s[98:99]"); self("s_waitcnt lgkmcnt(0)"); self("v_writelane_b32 v%d, s98, %d" % (vreg, k + 16))

def vr(b, n=1): return "v%d" % b if n == 1 else "v[%d:%d]" % (b, b + n - 1)
def ar(b, n=1): return "a%d" % b if n == 1 else "a[%d:%d]" % (b, b + n - 1)

def interleave(a, mf, fills):
    n = len(mf)
    slots = [[] for _ in range(n)]
    for (F, lo, hi) in fills:
        m = len(F)
        for k, f in enumerate(F):
            pos = lo + (k * (hi - lo)) // max(m, 1)
            slots[min(pos, n - 1)].append(f)
    for i in range(n):
        a(mf[i])
        for f in slots[i]: a(f)

class Loop:
    def __init__(self, a, nstep, nsub, mfmas, reads, group, need_labels, extra=None, dma_frac=0.6, read_frac=0.6, bar_pos=0, stampv=None):
        self.__dict__.update(locals())
        self.buf = 0
        self.pending = []
    def sub(self, step, s, group_override=None, no_barrier=False, hook=None):
        a = self.a
        last = (s == self.nsub - 1)
        M = self.mfmas(self.buf, step == 0 and s == 0)
        n = len(M)
        if a.stamp_on and a.step_stamps and self.stampv is not None and s == 0:
            a("s_memtime s[98:99]"); a("s_waitcnt lgkmcnt(0)"); a("v_writelane_b32 v%d, s98, %d" % (self.stampv, step))
        nstp, ns = (step + 1, 0) if last else (step, s + 1)
        R = self.reads(nstp, ns, self.buf ^ 1) if nstp < self.nstep else []
        if last:
            G = group_override if group_override is not None else self.group(step)
            k = int(len(G) * self.dma_frac + 0.999)
            D, self.pending = G[:k], G[k:]
        else:
            D, self.pending = self.pending, []
        E = self.extra(step, s) if self.extra else []
        a.auto_lgkm = True
        bp = self.bar_pos if (last and step + 1 < self.nstep) else 0
        if bp > 0:
            interleave(a, M[:bp], [(E[:len(E) * bp // n], 0, bp)])
            E = E[len(E) * bp // n:]
        if last and step + 1 < self.nstep:
            a("s_waitcnt lgkmcnt(0)")
            if not no_barrier:
                a.wait_vm(*self.need_labels(step + 1))
                a("s_barrier")
            if hook: hook()
        M2 = M[bp:]
        m = len(M2)
        hi = max(1, int(m * self.read_frac))
        fills = [(R, 0, hi), (D, 1, max(2, m - 1))]
        if E: fills.append((E, 1, m - 1))
        interleave(a, M2, fills)
        a.auto_lgkm = False
        self.buf ^= 1
    def run(self, s0, s1):
        for step in range(s0, s1):
            for s in range(self.nsub): self.sub(step, s)
```

```python
from lib import *
LOG2E = 0x3FB8AA3B
NSTEP = 16
CFG = {}
PTR_SETUP = None
STAGE2_PTRS = None

def flag_store(a, soff, tmpv):
    a("v_mov_b32 v%d, s91" % tmpv); a("v_mov_b32 v%d, 0" % (tmpv + 1))
    a("v_cmp_eq_u32 vcc, 0, v0")
    a("s_and_saveexec_b64 s[60:61], vcc")
    a.v("buffer_store_dword v%d, v%d, s[64:67], %s offen sc1" % (tmpv, tmpv + 1, soff), "flag")
    a("s_mov_b64 exec, s[60:61]")

def poll_tags(a, loads, tagregs, tmpv):
    Lp = a.newlabel("Lpoll"); Lq = a.newlabel("Lpolldone")
    a("s_mov_b32 s63, 0")
    a.label(Lp)
    for l in loads: a(l)
    a("s_waitcnt vmcnt(0)"); a.vm = []
    if len(tagregs) == 1:
        a("v_cmp_ne_u32 vcc, s91, v%d" % tagregs[0])
    else:
        a("v_xor_b32 v%d, s91, v%d" % (tmpv, tagregs[0]))
        for r in tagregs[1:]:
            a("v_xor_b32 v%d, s91, v%d" % (tmpv + 1, r))
            a("v_or_b32 v%d, v%d, v%d" % (tmpv, tmpv, tmpv + 1))
        a("v_cmp_ne_u32 vcc, 0, v%d" % tmpv)
    a("s_add_u32 s63, s63, 1")
    a("s_cbranch_vccz %s" % Lq)
    a("s_sleep %d" % CFG["sleep"])
    a("s_cmp_lt_u32 s63, 0x100000")
    a("s_cbranch_scc1 %s" % Lp)
    a.label(Lq)

def pf_code_list(label, vaddr, vdst, nchunk=1, srd=40):
    L = ["s_mov_b32 s%d, s100" % srd, "s_mov_b32 s%d, s101" % (srd + 1), "s_mov_b32 s%d, Lcode_end-Lpc" % (srd + 2), "s_mov_b32 s%d, 0x20000" % (srd + 3),
         "s_lshl_b32 s38, s35, 13", "s_add_u32 s38, s38, %s-Lpc" % label, "v_lshlrev_b32 v%d, 7, v0" % vaddr]
    for k in range(nchunk):
        if k: L.append("s_add_u32 s38, s38, 32768")
        L.append(("buffer_load_dword v%d, v%d, s[%d:%d], s38 offen" % (vdst, vaddr, srd, srd + 3), "pf"))
    return L

def pf_w_list(vaddr, vdst):
    return ["s_lshl_b32 s38, s2, 2", "s_add_u32 s38, s38, s35", "s_lshl_b32 s38, s38, 13",
            "s_mov_b32 s40, s72", "s_and_b32 s41, s73, 0xffff", "s_mov_b32 s42, 6291456", "s_mov_b32 s43, 0x20000",
            "v_lshlrev_b32 v%d, 7, v0" % vaddr,
            ("buffer_load_dword v%d, v%d, s[40:43], s38 offen" % (vdst, vaddr), "pf")]

def pf_w(a, vaddr, vdst):
    if not CFG["pfw"] or CFG["pfat"] >= 0: return
    if CFG["pfb"] == 1:
        L = a.newlabel("Lnopfb")
        a("s_lshl_b32 s38, s2, 2"); a("s_add_u32 s38, s38, s35")
        a("s_cmp_lt_u32 s38, 256")
        a("s_cselect_b32 s40, s44p, s46p".replace("s44p", "s86").replace("s46p", "s98")) if False else None
        a("s_cselect_b32 s40, s60, s62"); a("s_cselect_b32 s41, s61, s63")
        a("s_and_b32 s41, s41, 0xffff"); a("s_mov_b32 s42, 2097152"); a("s_mov_b32 s43, 0x20000")
        a("s_lshr_b32 s39, s38, 9"); a("s_cmp_eq_u32 s39, 0"); a("s_cselect_b32 s42, s42, 0")
        a("s_and_b32 s38, s38, 255"); a("s_lshl_b32 s38, s38, 13")
        a("v_lshlrev_b32 v%d, 7, v0" % vaddr)
        a.v("buffer_load_dword v%d, v%d, s[40:43], s38 offen" % (vdst, vaddr), "pf")
    a.emit(pf_w_list(vaddr, vdst))
    if CFG["pfw"] >= 2:
        L = a.newlabel("Lnopf2")
        a("s_lshl_b32 s38, s2, 2"); a("s_add_u32 s38, s38, s35")
        a("s_cmp_lt_u32 s38, 256")
        a("s_cselect_b32 s40, s44, s46"); a("s_cselect_b32 s41, s45, s47")
        a("s_cmp_lt_u32 s38, 512")
        a("s_cselect_b32 s40, s40, s74"); a("s_cselect_b32 s41, s41, s75")
        a("s_and_b32 s41, s41, 0xffff"); a("s_mov_b32 s42, 2097152")
        a("s_lshr_b32 s39, s38, 8"); a("s_cmp_eq_u32 s39, 3"); a("s_cselect_b32 s42, 0, s42")
        a("s_and_b32 s38, s38, 255"); a("s_lshl_b32 s38, s38, 13")
        a.v("buffer_load_dword v%d, v%d, s[40:43], s38 offen" % (vdst, vaddr), "pf")

def dma_x(step):
    st = step % 3
    L = []
    for p in range(8):
        if p % 4 == 0:
            L.append("s_add_u32 m0, s48, %d" % (st * 32768 + (p // 4) * 4096))
        L.append(("buffer_load_dwordx4 v%d, s[8:11], s%d offen offset:%d lds" % (2 + (p & 1), 16 + p, (p & 3) * 1024), "x%d" % step))
    return L
def adv_x():
    return ["s_add_u32 s76, s76, 128", "s_and_b32 s76, s76, 2047", "s_add_u32 s8, s80, s76", "s_addc_u32 s9, s81, 0"]
def init_x(a):
    a("s_mov_b32 s80, s8"); a("s_mov_b32 s81, s9")
    a("s_and_b32 s76, s33, %d" % CFG["rmask"])
    a("s_mul_i32 s76, s76, %d" % CFG["rmul"]); a("s_mov_b32 s99, s76"); a("s_lshl_b32 s76, s76, 7")
    a("s_add_u32 s8, s80, s76"); a("s_addc_u32 s9, s81, 0")

def x_frag_addr(a):
    a("v_and_b32 v14, 15, v0")
    a("v_lshlrev_b32 v14, 7, v14")
    a("v_lshrrev_b32 v15, 4, v0")
    a("v_bfe_u32 v16, v0, 1, 3")
    a("v_xor_b32 v15, v15, v16")
    a("v_lshlrev_b32 v15, 4, v15")
    a("v_add_u32 v14, v14, v15")
    a("s_lshl_b32 s52, s50, 14")
    a("v_add_u32 v8, s52, v14")
    a("v_xor_b32 v9, 64, v8")
    a("v_add_u32 v10, 0x10000, v8")
    a("v_add_u32 v11, 0x10000, v9")

def xread(step, s, reg, i):
    st = step % 3
    if st < 2:
        return "ds_read_b128 %s, v%d offset:%d" % (reg, 8 + s, st * 32768 + i * 2048)
    return "ds_read_b128 %s, v%d offset:%d" % (reg, 10 + s, i * 2048)

def merge(lists):
    out = []; k = 0
    while any(k < len(l) for l in lists):
        for l in lists:
            if k < len(l): out.append(l[k])
        k += 1
    return out

def rnd_inplace(regs):
    L = []
    for k in range(0, len(regs), 2):
        r0, r1 = regs[k], regs[k + 1]
        L.append("v_cvt_pk_bf16_f32 v%d, v%d, v%d" % (r1, r0, r1))
        L.append("v_lshlrev_b32 v%d, 16, v%d" % (r0, r1))
        L.append("v_and_b32 v%d, 0xffff0000, v%d" % (r1, r1))
    return L

def gen_B(a):
    cfg = CFG
    ACC0 = 64
    def acc(i, j): return ACC0 + (i * 6 + j) * 4
    def fx(buf, i): return ar(buf * 56 + i * 4, 4)
    def fw(buf, j, half=None):
        b = buf * 56 + 32 + j * 4
        return ar(b, 4) if half is None else ar(b + 2 * half, 2)
    a.c("---- B type")
    a("v_lshrrev_b32 v4, 3, v0")
    a("v_lshlrev_b32 v4, 11, v4")
    a("v_and_b32 v5, 7, v0")
    a("v_lshrrev_b32 v6, 4, v0")
    a("v_xor_b32 v5, v5, v6")
    a("v_lshlrev_b32 v5, 4, v5")
    a("v_add_u32 v2, v4, v5")
    a("v_xor_b32 v3, 64, v2")
    a("s_lshl_b32 s36, s32, 8")
    a("s_lshl_b32 s37, s35, 6")
    a("s_add_u32 s36, s36, s37")
    a("s_lshl_b32 s36, s36, 11")
    for p in range(8):
        a("s_add_u32 s%d, s36, %d" % (16 + p, 8 * p * 2048 - (p & 3) * 1024))
    a("v_lshrrev_b32 v4, 3, v0")
    a("v_mul_u32_u24 v4, 6144, v4")
    a("v_and_b32 v5, 7, v0")
    a("v_bfe_u32 v6, v0, 4, 1")
    a("v_lshlrev_b32 v6, 1, v6")
    a("v_xor_b32 v5, v5, v6")
    a("v_lshlrev_b32 v5, 4, v5")
    a("v_add_u32 v4, v4, v5")
    a("v_xor_b32 v5, 64, v4")
    a("s_lshl_b32 s38, s33, 7")
    a("s_mul_i32 s39, s35, 6")
    for q in range(6):
        imm = (q & 3) * 1024 if q < 4 else (q - 4) * 1024
        a("s_add_u32 s58, s39, %d" % q)
        a("s_lshr_b32 s59, s58, 3")
        a("s_and_b32 s58, s58, 7")
        a("s_mul_i32 s58, s58, %d" % (8 * 6144))
        a("s_lshl_b32 s59, s59, 11")
        a("s_add_u32 s58, s58, s59")
        a("s_add_u32 s58, s58, s38")
        a("s_sub_u32 s%d, s58, %d" % (24 + q, imm))
    a("s_lshl_b32 s48, s35, 13")
    a("s_mul_i32 s49, s35, 6144")
    a("s_add_u32 s49, s49, 98304")
    def dma_w(step):
        st = step % 2
        L = []
        for q in range(6):
            if q in (0, 4):
                L.append("s_add_u32 m0, s49, %d" % (st * 24576 + (4096 if q == 4 else 0)))
            imm = (q & 3) * 1024 if q < 4 else (q - 4) * 1024
            L.append(("buffer_load_dwordx4 v%d, s[12:15], s%d offen offset:%d lds" % (4 + (q & 1), 24 + q, imm), "w%d" % step))
        return L
    def adv_w():
        return ["s_add_u32 s77, s77, %d" % (64 * 6144), "s_cmp_eq_u32 s77, 6291456", "s_cselect_b32 s77, 0, s77",
                "s_add_u32 s12, s68, s77", "s_addc_u32 s13, s69, 0"]
    PTR_SETUP(a)
    a("s_mov_b32 s12, s72"); a("s_and_b32 s13, s73, 0xffff"); a("s_mov_b32 s14, 6291456"); a("s_mov_b32 s15, 0x20000")
    init_x(a)
    a("s_mov_b32 s68, s12"); a("s_mov_b32 s69, s13")
    a("s_mul_i32 s77, s99, %d" % (64 * 6144))
    a("s_add_u32 s12, s68, s77"); a("s_addc_u32 s13, s69, 0")
    a.stamp(12)
    a.emit(dma_w(0) + dma_x(0) + adv_w() + adv_x())
    a.stamp(13)
    a.emit(dma_w(1) + dma_x(1) + adv_w() + adv_x())
    a.stamp(9)
    late = dma_x(2) + adv_x()
    if not cfg["late2"]:
        a.emit(late); late = []
    pf_w(a, 22, 21)
    x_frag_addr(a)
    a("v_lshrrev_b32 v15, 4, v0")
    a("v_lshlrev_b32 v16, 3, v15")
    a("v_bfe_u32 v19, v0, 2, 2")
    a("v_add_u32 v16, v16, v19")
    a("v_lshlrev_b32 v16, 7, v16")
    a("v_bfe_u32 v20, v0, 1, 1")
    a("s_lshl_b32 s53, s51, 2")
    a("v_add_u32 v20, s53, v20")
    a("v_lshrrev_b32 v19, 1, v19")
    a("v_lshlrev_b32 v19, 1, v19")
    a("v_xor_b32 v20, v20, v19")
    a("v_and_b32 v15, 1, v15")
    a("v_lshlrev_b32 v15, 2, v15")
    a("v_xor_b32 v20, v20, v15")
    a("v_lshlrev_b32 v20, 4, v20")
    a("v_add_u32 v16, v16, v20")
    a("v_and_b32 v20, 1, v0")
    a("v_lshlrev_b32 v20, 3, v20")
    a("v_add_u32 v16, v16, v20")
    a("v_add_u32 v12, 98304, v16")
    a("v_xor_b32 v13, 32, v12")
    a("v_add_u32 v17, 24576, v12")
    a("v_add_u32 v18, 24576, v13")
    DEF = cfg["defq"]
    def reads(step, s, buf, js=None):
        if js is None: js = range(6) if step < NSTEP - DEF else range(2, 6)
        X = [xread(step, s, fx(buf, i), i) for i in range(8)]
        W = []
        for j in js:
            base = (12 if step % 2 == 0 else 17) + (j & 1)
            for hf in range(2):
                W.append("ds_read_b64_tr_b16 %s, v%d offset:%d" % (fw(buf, j, hf), base, (j >> 1) * 8192 + s * 4096 + hf * 512))
        return [X[0]] + W + X[1:]
    cur = {"step": 0}
    def mfmas(buf, zero, js=None):
        if js is None: js = range(6) if cur["step"] < NSTEP - DEF else range(2, 6)
        L = []
        for i in range(8):
            for j in js:
                d = vr(acc(i, j), 4); c = "0" if zero else d
                if j < 2: L.append("v_mfma_f32_16x16x32_bf16 %s, %s, %s, %s" % (d, fw(buf, j), fx(buf, i), c))
                else:     L.append("v_mfma_f32_16x16x32_bf16 %s, %s, %s, %s" % (d, fx(buf, i), fw(buf, j), c))
        return L
    def group(st):
        G = []
        if st + 2 < NSTEP: G += dma_w(st + 2) + adv_w()
        if st + 3 < NSTEP: G += dma_x(st + 3) + adv_x()
        if cfg["pfw"] and st == cfg["pfat"]: G += pf_w_list(22, 21)
        if cfg["pfe"] and st == 12: G += pf_code_list("LepiB", 22, 21)
        return G
    a.stamp(1)
    a.wait_vm("x0", "w0")
    a("s_barrier")
    a.stamp(2)
    a.emit(reads(0, 0, 0))
    lp = Loop(a, NSTEP, 2, mfmas, reads, group, lambda t: ("x%d" % t, "w%d" % t), stampv=63, bar_pos=cfg["bpB"], read_frac=cfg["rfB"])
    lp.pending = late
    for st_ in range(NSTEP):
        cur["step"] = st_
        lp.run(st_, st_ + 1)
    if a.stamp_on:
        a('s_memtime s[98:99]'); a('s_waitcnt lgkmcnt(0)'); a('v_writelane_b32 v63, s98, 16'); a('v_accvgpr_write_b32 a120, v63')
    a.stamp(3)
    a.label("LepiB")
    STAGE2_PTRS(a)
    a.c("---- B epilogue")
    a("s_add_u32 s91, s91, 1")
    a("s_mov_b32 s54, 0x%x" % LOG2E); a("s_mov_b32 s55, s54")
    a("s_mov_b32 s56, 0x358637bd"); a("s_mov_b32 s57, s56")
    a("s_nop 7")
    def phi_tile(b, t):
        L = []
        if cfg["round_qk"]: L += rnd_inplace([b, b + 1, b + 2, b + 3])
        for p in (0, 2): L.append("v_pk_mul_f32 %s, %s, s[54:55]" % (vr(t + p, 2), vr(b + p, 2)))
        for r in range(4): L.append("v_exp_f32 v%d, v%d" % (t + r, t + r))
        for p in (0, 2): L.append("v_pk_add_f32 %s, %s, s[56:57] clamp" % (vr(t + p, 2), vr(t + p, 2)))
        for p in (0, 2): L.append("v_pk_add_f32 %s, %s, %s" % (vr(b + p, 2), vr(b + p, 2), vr(t + p, 2)))
        for r in range(4): L.append("v_max_f32 v%d, v%d, v%d" % (b + r, b + r, t + r))
        return L
    def pack2(b0, b1):
        a("v_cvt_pk_bf16_f32 v%d, v%d, v%d" % (b0, b0, b0 + 1))
        a("v_cvt_pk_bf16_f32 v%d, v%d, v%d" % (b0 + 1, b0 + 2, b0 + 3))
        a("v_cvt_pk_bf16_f32 v%d, v%d, v%d" % (b0 + 2, b1, b1 + 1))
        a("v_cvt_pk_bf16_f32 v%d, v%d, v%d" % (b0 + 3, b1 + 2, b1 + 3))
    TMP = 56
    for ip in range(4):
        for dt in range(2):
            a.emit(merge([phi_tile(acc(2 * ip, 2 + dt), TMP), phi_tile(acc(2 * ip + 1, 2 + dt), TMP + 4)]))
            pack2(acc(2 * ip, 2 + dt), acc(2 * ip + 1, 2 + dt))
        for et in range(2):
            pack2(acc(2 * ip, 4 + et), acc(2 * ip + 1, 4 + et))
    KV = 24; ONES = 48
    for r in range(4): a("v_mov_b32 v%d, 0x3f803f80" % (ONES + r))
    a("s_nop 1")
    for ip in range(4):
        for dt in range(2):
            for et in range(3):
                d = vr(KV + (dt * 3 + et) * 4, 4)
                B = vr(acc(2 * ip, 4 + et), 4) if et < 2 else vr(ONES, 4)
                a("v_mfma_f32_16x16x32_bf16 %s, %s, %s, %s" % (d, vr(acc(2 * ip, 2 + dt), 4), B, "0" if ip == 0 else d))
    a.stamp(4)
    SCR = 32768
    a("v_lshlrev_b32 v52, 4, v0")
    a("s_mul_i32 s58, s51, 6144")
    a("s_add_u32 s58, s58, %d" % SCR)
    a("v_add_u32 v52, s58, v52")
    a("s_nop 7")
    L1 = a.newlabel("Lb_th0"); L2 = a.newlabel("Lb_pub_done")
    a("s_cmp_eq_u32 s50, 0")
    a("s_cbranch_scc1 %s" % L1)
    for k in range(6): a("ds_write_b128 v52, %s offset:%d" % (vr(KV + 4 * k, 4), k * 1024))
    a("s_waitcnt lgkmcnt(0)")
    a("s_barrier")
    a("s_branch %s" % L2)
    a.label(L1)
    a("s_barrier")
    for k in range(6): a("ds_read_b128 %s, v52 offset:%d" % (vr(acc(k, 2), 4), k * 1024))
    a("s_waitcnt lgkmcnt(0)")
    for k in range(6):
        for r in range(4): a("v_add_f32 v%d, v%d, v%d" % (KV + 4 * k + r, KV + 4 * k + r, acc(k, 2) + r))
    a("s_lshl_b32 s58, s33, 3")
    a("s_add_u32 s58, s58, s32")
    a("s_lshl_b32 s58, s58, 1")
    a("s_add_u32 s58, s58, s51")
    a("s_lshl_b32 s62, s58, 7")
    a("s_add_u32 s62, s62, %d" % WS_KVF)
    a("s_mul_i32 s58, s58, %d" % KVP_HEAD)
    a("s_add_u32 s58, s58, %d" % WS_KVP)
    a("v_lshlrev_b32 v53, 4, v0")
    for dt in range(2):
        for et in range(2):
            a("buffer_store_dwordx4 %s, v53, s[64:67], s58 offen offset:%d sc1" % (vr(KV + (dt * 3 + et) * 4, 4), (dt * 2 + et) * 1024))
    a("s_add_u32 s59, s58, 4096")
    a("v_and_b32 v54, 15, v0")
    a("v_cmp_eq_u32 vcc, 0, v54")
    a("s_and_saveexec_b64 s[60:61], vcc")
    for dt in range(2):
        a("buffer_store_dwordx4 %s, v0, s[64:67], s59 offen offset:%d sc1" % (vr(KV + (dt * 3 + 2) * 4, 4), dt * 64))
    a("s_mov_b64 exec, s[60:61]")
    a("s_waitcnt vmcnt(0)")
    flag_store(a, "s62", 54)
    a.label(L2)
    a.vm = []
    a.stamp(5)
    if DEF:
        a.lds = None
        subs = [(t, s_) for t in range(NSTEP - DEF, NSTEP) for s_ in range(2)]
        a.emit(reads(subs[0][0], subs[0][1], 0, js=(0, 1)))
        for n_, (t, s_) in enumerate(subs):
            M = mfmas(n_ & 1, False, js=(0, 1))
            R = reads(subs[n_ + 1][0], subs[n_ + 1][1], (n_ + 1) & 1, js=(0, 1)) if n_ + 1 < len(subs) else []
            a.auto_lgkm = True
            interleave(a, M, [(R, 0, 10)])
            a.auto_lgkm = False
        a("s_nop 7")
    if not cfg["bq2"]:
        for i in range(8):
            a.emit(merge([phi_tile(acc(i, 0), TMP), phi_tile(acc(i, 1), TMP + 4)]))
            pack2(acc(i, 0), acc(i, 1))
        a.stamp(6)
    a("s_lshl_b32 s58, s33, 3")
    a("s_lshl_b32 s59, s50, 2")
    a("s_add_u32 s58, s58, s59")
    a("s_lshl_b32 s58, s58, 1")
    a("s_add_u32 s58, s58, s51")
    a("s_lshl_b32 s62, s58, 7")
    a("s_add_u32 s62, s62, %d" % WS_KVF)
    a("v_and_b32 v55, 3, v0")
    a("v_lshlrev_b32 v55, 8, v55")
    poll_tags(a, ["buffer_load_dword v54, v55, s[64:67], s62 offen sc1"], [54], 56)
    a.stamp(7)
    a("s_mul_i32 s58, s58, %d" % KVP_HEAD)
    a("s_add_u32 s58, s58, %d" % WS_KVP)
    a("v_lshlrev_b32 v53, 4, v0")
    a("v_lshrrev_b32 v54, 4, v0")
    a("v_lshlrev_b32 v54, 4, v54")
    for p in range(4):
        for k in range(4):
            a.v("buffer_load_dwordx4 %s, v53, s[64:67], s58 offen offset:%d sc1" % (vr(acc(2 * p, 2 + k), 4), k * 1024), "p%d" % p)
        a("s_add_u32 s59, s58, 4096")
        for dt in range(2):
            a.v("buffer_load_dwordx4 %s, v54, s[64:67], s59 offen offset:%d sc1" % (vr(acc(2 * p + 1, 2 + dt), 4), dt * 64), "p%d" % p)
        if p < 3: a("s_add_u32 s58, s58, %d" % (2 * KVP_HEAD))
    def part(p, dt, et): return acc(2 * p, 2 + dt * 2 + et) if et < 2 else acc(2 * p + 1, 2 + dt)
    if cfg["bq2"]:
        for i in range(8):
            a.emit(merge([phi_tile(acc(i, 0), TMP), phi_tile(acc(i, 1), TMP + 4)]))
            pack2(acc(i, 0), acc(i, 1))
        a.stamp(6)
    a.wait_vm("p1")
    for dt in range(2):
        for et in range(3):
            for r in range(4):
                a("v_add_f32 v%d, v%d, v%d" % (KV + (dt * 3 + et) * 4 + r, part(0, dt, et) + r, part(1, dt, et) + r))
    for p in (2, 3):
        a.wait_vm("p%d" % p)
        for dt in range(2):
            for et in range(3):
                for r in range(4):
                    a("v_add_f32 v%d, v%d, v%d" % (KV + (dt * 3 + et) * 4 + r, KV + (dt * 3 + et) * 4 + r, part(p, dt, et) + r))
    a.stamp(8)
    a("v_lshlrev_b32 v52, 4, v0")
    a("s_mul_i32 s58, s35, 6144")
    a("s_add_u32 s58, s58, 49152")
    a("v_add_u32 v53, s58, v52")
    a("s_xor_b32 s59, s35, 2")
    a("s_mul_i32 s59, s59, 6144")
    a("s_add_u32 s59, s59, 49152")
    a("v_add_u32 v54, s59, v52")
    for k in range(6): a("ds_write_b128 v53, %s offset:%d" % (vr(KV + 4 * k, 4), k * 1024))
    a("s_waitcnt lgkmcnt(0)")
    a("s_barrier")
    for k in range(6): a("ds_read_b128 %s, v54 offset:%d" % (vr(acc(k, 2), 4), k * 1024))
    a("s_waitcnt lgkmcnt(0)")
    for k in range(6):
        for r in range(4): a("v_add_f32 v%d, v%d, v%d" % (KV + 4 * k + r, KV + 4 * k + r, acc(k, 2) + r))
    AKV = 48
    for et in range(3):
        for dt in range(2):
            b = KV + (dt * 3 + et) * 4
            a("v_cvt_pk_bf16_f32 v%d, v%d, v%d" % (AKV + et * 4 + 2 * dt, b, b + 1))
            a("v_cvt_pk_bf16_f32 v%d, v%d, v%d" % (AKV + et * 4 + 2 * dt + 1, b + 2, b + 3))
    a.stamp(9)
    a("s_lshl_b32 s58, s32, 1")
    a("s_add_u32 s58, s58, s50")
    a("s_lshl_b32 s58, s58, 4")
    a("s_add_u32 s58, s58, s33")
    a("s_lshl_b32 s58, s58, 14")
    a("s_lshl_b32 s59, s51, 10")
    a("s_add_u32 s58, s58, s59")
    a("s_add_u32 s58, s58, %d" % WS_O)
    a("v_lshlrev_b32 v60, 4, v0")
    a("s_nop 0")
    for i in range(8):
        for et in range(3):
            a("v_mfma_f32_16x16x32_bf16 %s, %s, %s, 0" % (vr(acc(i, 2 + et), 4), vr(AKV + et * 4, 4), vr(acc(i, 0), 4)))
    a("s_nop 4")
    for i in range(8):
        n0, n1, dn, of = acc(i, 2), acc(i, 3), acc(i, 4), acc(i, 5)
        if cfg["round_num"]:
            a.emit(rnd_inplace([n0, n0 + 1, n0 + 2, n0 + 3, n1, n1 + 1, n1 + 2, n1 + 3]))
            a("v_cvt_pk_bf16_f32 v%d, v%d, v%d" % (dn, dn, dn))
            a("v_lshlrev_b32 v%d, 16, v%d" % (dn, dn))
        a("v_add_f32 v%d, s56, v%d" % (dn, dn))
        a("v_rcp_f32 v%d, v%d" % (dn, dn))
        a("s_nop 0")
        for r in range(4): a("v_mul_f32 v%d, v%d, v%d" % (n0 + r, n0 + r, dn))
        for r in range(4): a("v_mul_f32 v%d, v%d, v%d" % (n1 + r, n1 + r, dn))
        a("v_cvt_pk_bf16_f32 v%d, v%d, v%d" % (of, n0, n0 + 1))
        a("v_cvt_pk_bf16_f32 v%d, v%d, v%d" % (of + 1, n0 + 2, n0 + 3))
        a("v_cvt_pk_bf16_f32 v%d, v%d, v%d" % (of + 2, n1, n1 + 1))
        a("v_cvt_pk_bf16_f32 v%d, v%d, v%d" % (of + 3, n1 + 2, n1 + 3))
        if i >= 2 and i % 2 == 0: a("s_add_u32 s58, s58, 4096")
        a.v("buffer_store_dwordx4 %s, v60, s[64:67], s58 offen offset:%d sc1" % (vr(of, 4), (i % 2) * 2048), "o")
    a("s_lshl_b32 s58, s32, 4")
    a("s_add_u32 s58, s58, s33")
    a("s_lshl_b32 s58, s58, 7")
    a("s_lshl_b32 s59, s35, 2")
    a("s_add_u32 s58, s58, s59")
    a("s_add_u32 s58, s58, %d" % WS_OF)
    a.stamp(10)
    a.wait_all()
    flag_store(a, "s58", 54)
    a.stamp(11)

def cmulL(dr, di, ar_, ai, br, bi, t):
    return ["v_mul_f32 v%d, v%d, v%d" % (t, ai, bi), "v_mul_f32 v%d, v%d, v%d" % (t + 1, ai, br),
            "v_fma_f32 v%d, v%d, v%d, -v%d" % (dr, ar_, br, t), "v_fma_f32 v%d, v%d, v%d, v%d" % (di, ar_, bi, t + 1)]

def gen_A(a):
    cfg = CFG
    ACC0 = 128
    def acc(i, cj): return ACC0 + (i * 4 + cj) * 4
    def fx(buf, i): return ar(buf * 48 + i * 4, 4)
    def fb(buf, cj): return ar(buf * 48 + 32 + cj * 4, 4)
    a.c("---- A type")
    a("v_lshrrev_b32 v4, 5, v0")
    a("v_lshlrev_b32 v4, 5, v4")
    a("v_bfe_u32 v5, v0, 3, 2")
    a("v_add_u32 v4, v4, v5")
    a("v_lshlrev_b32 v4, 11, v4")
    a("v_and_b32 v5, 7, v0")
    a("v_lshrrev_b32 v12, 4, v0")
    a("v_xor_b32 v5, v5, v12")
    a("v_lshlrev_b32 v5, 4, v5")
    a("v_add_u32 v2, v4, v5")
    a("v_xor_b32 v3, 64, v2")
    a("s_lshl_b32 s36, s32, 8")
    a("s_lshl_b32 s37, s50, 7")
    a("s_add_u32 s36, s36, s37")
    a("s_lshl_b32 s37, s51, 4")
    a("s_add_u32 s36, s36, s37")
    a("s_lshl_b32 s36, s36, 11")
    for p in range(8):
        rows = 4 * (p >> 1) + 64 * (p & 1)
        a("s_add_u32 s%d, s36, %d" % (16 + p, rows * 2048 - (p & 3) * 1024))
    a("v_lshrrev_b32 v4, 3, v0")
    a("v_lshlrev_b32 v4, 11, v4")
    a("v_and_b32 v5, 7, v0")
    a("v_xor_b32 v5, v5, v12")
    a("v_lshlrev_b32 v5, 4, v5")
    a("v_add_u32 v4, v4, v5")
    a("v_xor_b32 v5, 64, v4")
    a("s_lshl_b32 s36, s33, 6")
    a("s_lshl_b32 s37, s51, 5")
    a("s_add_u32 s36, s36, s37")
    a("s_lshl_b32 s36, s36, 11")
    for p in range(4):
        a("s_add_u32 s%d, s36, %d" % (24 + p, 8 * p * 2048 - p * 1024))
    a("s_lshl_b32 s48, s35, 13")
    a("s_lshl_b32 s49, s35, 12")
    a("s_add_u32 s49, s49, 98304")
    NB = cfg["nbA"]
    def dma_b(step):
        st = step % NB
        L = ["s_add_u32 m0, s49, %d" % (st * 16384)]
        for p in range(4):
            L.append(("buffer_load_dwordx4 v%d, s[12:15], s%d offen offset:%d lds" % (4 + (p & 1), 24 + p, p * 1024), "w%d" % step))
        return L
    def adv_b():
        return ["s_add_u32 s77, s77, 128", "s_and_b32 s77, s77, 2047", "s_add_u32 s12, s68, s77", "s_addc_u32 s13, s69, 0"]
    PTR_SETUP(a)
    a("s_cmp_lt_u32 s35, 2")
    a("s_cselect_b32 s12, s68, s70")
    a("s_cselect_b32 s13, s69, s71")
    a("s_and_b32 s13, s13, 0xffff")
    a("s_mov_b32 s14, 2097152")
    a("s_mov_b32 s15, 0x20000")
    init_x(a)
    a("s_mov_b32 s68, s12"); a("s_mov_b32 s69, s13")
    a("s_mov_b32 s77, s76")
    a("s_add_u32 s12, s68, s77"); a("s_addc_u32 s13, s69, 0")
    a("s_lshr_b32 s36, s2, 3"); a("s_lshl_b32 s36, s36, 3"); a("s_and_b32 s37, s2, 7"); a("s_add_u32 s36, s36, s37")
    a("s_lshl_b32 s34, s36, 2"); a("s_add_u32 s34, s34, s35")
    a("v_lshlrev_b32 v17, 7, v0")
    a.stamp(12)
    a.emit(dma_b(0) + dma_x(0))
    a.stamp(13)
    GX = 40
    a("s_mov_b32 s84, s88"); a("s_and_b32 s85, s89, 0xffff"); a("s_mov_b32 s86, 2048"); a("s_mov_b32 s87, 0x20000")
    a("v_lshlrev_b32 v6, 5, v0")
    a("s_lshl_b32 s36, s32, 8")
    a("s_lshl_b32 s37, s33, 4")
    a("s_add_u32 s36, s36, s37")
    a("s_lshl_b32 s37, s35, 2")
    a("s_add_u32 s36, s36, s37")
    a("s_mov_b32 s90, s36")
    a("s_lshl_b32 s36, s36, 11")
    a("s_mov_b32 s40, s80"); a("s_mov_b32 s41, s81"); a("s_mov_b32 s42, 4194304"); a("s_mov_b32 s43, 0x20000")
    for rr in range(4):
        a.v("buffer_load_dwordx4 %s, v6, s[40:43], s36 offen" % vr(GX + 8 * rr, 4), "sm")
        a.v("buffer_load_dwordx4 %s, v6, s[40:43], s36 offen offset:16" % vr(GX + 8 * rr + 4, 4), "sm")
        if rr < 3: a("s_add_u32 s36, s36, 2048")
    a.v("buffer_load_dwordx4 %s, v6, s[84:87], 0 offen" % vr(72, 4), "sm")
    a.v("buffer_load_dwordx4 %s, v6, s[84:87], 0 offen offset:16" % vr(76, 4), "sm")
    a("v_and_b32 v7, 15, v0")
    a("s_lshl_b32 s36, s33, 6")
    a("s_lshl_b32 s37, s51, 5")
    a("s_add_u32 s36, s36, s37")
    a("v_add_u32 v7, s36, v7")
    a("v_lshlrev_b32 v7, 1, v7")
    for k, (lo, hi) in enumerate([(92, 93), (94, 95), (96, 97)]):
        a("s_mov_b32 s84, s%d" % lo); a("s_and_b32 s85, s%d, 0xffff" % hi)
        a.v("buffer_load_ushort v%d, v7, s[84:87], 0 offen" % (80 + 2 * k), "sm")
        a.v("buffer_load_ushort v%d, v7, s[84:87], 0 offen offset:32" % (81 + 2 * k), "sm")
    a.emit(adv_b() + adv_x() + dma_b(1) + dma_x(1) + adv_b() + adv_x())
    late = dma_b(2) + dma_x(2) + adv_b() + adv_x()
    if NB == 4: late += dma_b(3) + adv_b()
    if not cfg["late2"]:
        a.emit(late); late = []
    pf_w(a, 17, 18)
    x_frag_addr(a)
    a("s_lshl_b32 s53, s51, 12")
    a("s_add_u32 s53, s53, 98304")
    a("v_add_u32 v12, s53, v14")
    a("v_xor_b32 v13, 64, v12")
    a("s_mov_b32 s54, 0x%x" % LOG2E)
    a("s_and_b32 s75, s75, 0xffff")
    if cfg["pf"]:
        a("s_mul_i32 s38, s34, 12288")
        a("s_lshr_b32 s37, s38, 21")
        a("s_and_b32 s38, s38, 0x1fffff")
        a("s_cmp_eq_u32 s37, 0")
        a("s_cselect_b32 s40, s44, s46"); a("s_cselect_b32 s41, s45, s47")
        a("s_cmp_eq_u32 s37, 2")
        a("s_cselect_b32 s40, s74, s40"); a("s_cselect_b32 s41, s75, s41")
        a("s_and_b32 s41, s41, 0xffff"); a("s_mov_b32 s42, 2097152"); a("s_mov_b32 s43, 0x20000")
        a("v_lshlrev_b32 v17, 7, v0")
        a("v_cmp_gt_u32 vcc, 12, v0")
        a("v_cndmask_b32 v17, -1, v17, vcc") if False else None
        a("v_mov_b32 v16, 0x7fffffff")
        a("s_nop 0")
        a("v_cndmask_b32 v17, v16, v17, vcc")
    work = []
    w = work.append
    W = 88
    for k in range(8):
        w("v_lshlrev_b32 v%d, 16, v%d" % (W + 2 * k, 72 + k)); w("v_and_b32 v%d, 0xffff0000, v%d" % (W + 2 * k + 1, 72 + k))
    GS = 104; T = 108
    for k in range(8):
        for rr in range(4):
            x = GX + 8 * rr + k; t = T + 3 * rr
            w("v_lshlrev_b32 v%d, 16, v%d" % (t, x)); w("v_and_b32 v%d, 0xffff0000, v%d" % (t + 1, x))
        for rr in range(4):
            t = T + 3 * rr
            w("v_mul_f32 v%d, v%d, v%d" % (t, t, W + 2 * k)); w("v_mul_f32 v%d, v%d, v%d" % (t + 1, t + 1, W + 2 * k + 1))
        for rr in range(4):
            t = T + 3 * rr
            w("v_cvt_pk_bf16_f32 v%d, v%d, v%d" % (t + 2, t, t + 1))
        for rr in range(4):
            t = T + 3 * rr
            w("v_lshlrev_b32 v%d, 16, v%d" % (t, t + 2)); w("v_and_b32 v%d, 0xffff0000, v%d" % (t + 1, t + 2))
        for rr in range(4):
            t = T + 3 * rr
            w("v_add_f32 v%d, v%d, v%d" % (GS + rr, t, t + 1) if k == 0 else "v_add_f32 v%d, v%d, v%d" % (GS + rr, GS + rr, t))
        if k > 0:
            for rr in range(4): w("v_add_f32 v%d, v%d, v%d" % (GS + rr, GS + rr, T + 3 * rr + 1))
    for dpp in ["row_shr:1", "row_shr:2", "row_shr:4", "row_shr:8", "row_bcast:15 row_mask:0xa", "row_bcast:31 row_mask:0xc"]:
        for rr in range(4):
            if "shr" in dpp: w("v_add_f32_dpp v%d, v%d, v%d %s row_mask:0xf bank_mask:0xf bound_ctrl:0" % (GS + rr, GS + rr, GS + rr, dpp))
            else: w("v_add_f32_dpp v%d, v%d, v%d %s bank_mask:0xf" % (GS + rr, GS + rr, GS + rr, dpp))
    def unpack4():
        w("v_cvt_pk_bf16_f32 v108, v104, v105"); w("v_cvt_pk_bf16_f32 v109, v106, v107")
        w("v_lshlrev_b32 v104, 16, v108"); w("v_and_b32 v105, 0xffff0000, v108")
        w("v_lshlrev_b32 v106, 16, v109"); w("v_and_b32 v107, 0xffff0000, v109")
    unpack4()
    for rr in range(4): w("v_mul_f32_e64 v%d, -v%d, s54" % (GS + rr, GS + rr))
    for rr in range(4): w("v_exp_f32 v%d, v%d" % (GS + rr, GS + rr))
    w("s_nop 0")
    for rr in range(4): w("v_add_f32 v%d, 1.0, v%d" % (GS + rr, GS + rr))
    for rr in range(4): w("v_rcp_f32 v%d, v%d" % (GS + rr, GS + rr))
    w("s_nop 0")
    unpack4()
    for X in range(2):
        CF = 20 + 10 * X
        lre, lim, ldt = 80 + X, 82 + X, 84 + X
        t = 40 + 8 * X
        w("v_lshlrev_b32 v%d, 16, v%d" % (lre, lre)); w("v_lshlrev_b32 v%d, 16, v%d" % (lim, lim)); w("v_lshlrev_b32 v%d, 16, v%d" % (ldt, ldt))
        w("v_mul_f32 v%d, s54, v%d" % (ldt, ldt))
        w("v_exp_f32 v%d, v%d" % (ldt, ldt)); w("s_nop 0")
        w("v_cvt_pk_bf16_f32 v%d, v%d, v%d" % (ldt, ldt, ldt))
        w("v_lshlrev_b32 v%d, 16, v%d" % (ldt, ldt))
        w("v_mul_f32 v%d, v%d, v%d" % (t, ldt, lre)); w("v_mul_f32 v%d, v%d, v%d" % (t + 1, ldt, lim))
        w("v_mul_f32 v%d, s54, v%d" % (t, t))
        w("v_exp_f32 v%d, v%d" % (t, t))
        w("v_mul_f32 v%d, 0.15915494, v%d" % (t + 1, t + 1))
        w("v_rndne_f32 v%d, v%d" % (t + 2, t + 1))
        w("v_sub_f32 v%d, v%d, v%d" % (t + 1, t + 1, t + 2))
        w("v_cos_f32 v%d, v%d" % (t + 2, t + 1)); w("v_sin_f32 v%d, v%d" % (t + 3, t + 1)); w("s_nop 0")
        w("v_mul_f32 v%d, v%d, v%d" % (CF, t, t + 2)); w("v_mul_f32 v%d, v%d, v%d" % (CF + 1, t, t + 3))
        w("v_add_f32 v%d, -1.0, v%d" % (t, CF))
        w("v_mul_f32 v%d, v%d, v%d" % (t + 2, lre, lre))
        w("v_fma_f32 v%d, v%d, v%d, v%d" % (t + 2, lim, lim, t + 2))
        w("v_rcp_f32 v%d, v%d" % (t + 2, t + 2))
        w("v_mul_f32 v%d, v%d, v%d" % (t + 3, t, lre))
        w("v_fma_f32 v%d, v%d, v%d, v%d" % (t + 3, CF + 1, lim, t + 3))
        w("v_mul_f32 v%d, v%d, v%d" % (t + 4, t, lim))
        w("v_fma_f32 v%d, v%d, v%d, -v%d" % (t + 4, CF + 1, lre, t + 4))
        w("v_mul_f32 v%d, v%d, v%d" % (CF + 8, t + 3, t + 2)); w("v_mul_f32 v%d, v%d, v%d" % (CF + 9, t + 4, t + 2))
        work += cmulL(CF + 2, CF + 3, CF, CF + 1, CF, CF + 1, t)
        work += cmulL(t + 2, t + 3, CF + 2, CF + 3, CF + 2, CF + 3, t)
        work += cmulL(t + 4, t + 5, t + 2, t + 3, t + 2, t + 3, t)
        work += cmulL(t + 2, t + 3, t + 4, t + 5, t + 4, t + 5, t)
        work += cmulL(CF + 4, CF + 5, t + 2, t + 3, t + 2, t + 3, t)
        work += cmulL(t + 2, t + 3, CF + 4, CF + 5, CF + 4, CF + 5, t)
        work += cmulL(t + 4, t + 5, t + 2, t + 3, t + 2, t + 3, t)
        work += cmulL(CF + 6, CF + 7, t + 4, t + 5, t + 4, t + 5, t)
    first, nsl = 1, 26
    per = (len(work) + nsl - 1) // nsl
    def extra(step, s):
        k = (step - first) * 2 + s
        return work[k * per:(k + 1) * per] if k >= 0 else []
    def reads(step, s, buf):
        X = [xread(step, s, fx(buf, i), i) for i in range(8)]
        st = step % NB
        B = ["ds_read_b128 %s, v%d offset:%d" % (fb(buf, cj), 12 + s, st * 16384 + (cj >> 1) * 8192 + (cj & 1) * 2048) for cj in range(4)]
        return [X[0]] + B + X[1:]
    def mfmas(buf, zero):
        L = []
        for i in range(8):
            for cj in range(4):
                d = vr(acc(i, cj), 4)
                L.append("v_mfma_f32_16x16x32_bf16 %s, %s, %s, %s" % (d, fx(buf, i), fb(buf, cj), "0" if zero else d))
        return L
    if cfg["tlb"]:
        a("v_lshlrev_b32 v19, 21, v0")
        a.v("buffer_load_dword v18, v19, s[64:67], 0 offen", "pf")
        a("s_mov_b32 s40, s82"); a("s_and_b32 s41, s83, 0xffff"); a("s_mov_b32 s42, 0x800000"); a("s_mov_b32 s43, 0x20000")
        a.v("buffer_load_dword v18, v19, s[40:43], 0 offen", "pf")
        a("s_add_u32 s38, 0x800000, -128" if False else "s_mov_b32 s38, 0x7fff80")
        a("v_mov_b32 v16, 0")
        a.v("buffer_load_dword v18, v16, s[40:43], s38 offen", "pf")
        a("v_min_u32 v19, 0x1fff80, v19")
        a("s_mov_b32 s42, 0x200000")
        for lo, hi in ((44, 45), (46, 47), (74, 75)):
            a("s_mov_b32 s40, s%d" % lo); a("s_and_b32 s41, s%d, 0xffff" % hi)
            a.v("buffer_load_dword v18, v19, s[40:43], 0 offen", "pf")
    def group(st):
        G = []
        if st + NB < NSTEP: G += dma_b(st + NB) + adv_b()
        if st + 3 < NSTEP: G += dma_x(st + 3) + adv_x()
        if cfg["pfw"] and st == cfg["pfat"]: G += pf_w_list(17, 18)
        if cfg["pfe"] and st == 12: G += pf_code_list("LepiA", 17, 18)
        if cfg["pf"] and cfg["pfstep"] <= st < cfg["pfstep"] + 8:
            k = st - cfg["pfstep"]
            G += ["s_add_u32 s39, s38, %d" % (k * 1536)]
            G.append(("buffer_load_dword v18, v17, s[40:43], s39 offen", "pf"))
        return G
    a.stamp(1)
    a.wait_vm("x0", "w0")
    a("s_barrier")
    a.stamp(2)
    a.emit(reads(0, 0, 0))
    lp = Loop(a, NSTEP, 2, mfmas, reads, group, lambda t: ("x%d" % t, "w%d" % t) + (("sm",) if t == 1 else ()), extra=extra, stampv=19, bar_pos=cfg["bpA"], read_frac=cfg["rfA"])
    lp.pending = late
    lp.run(0, NSTEP)
    if a.stamp_on:
        a('s_memtime s[98:99]'); a('s_waitcnt lgkmcnt(0)'); a('v_writelane_b32 v19, s98, 16'); a('v_accvgpr_write_b32 a120, v19')
    a.stamp(3)
    a.label("LepiA")
    STAGE2_PTRS(a)
    a.c("---- A epilogue")
    a("s_add_u32 s91, s91, 1")
    a("s_lshl_b32 s58, s90, 2")
    a("s_add_u32 s58, s58, %d" % WS_G)
    a("v_mov_b32 v6, 0")
    a("v_cmp_eq_u32 vcc, 63, v0")
    a("s_and_saveexec_b64 s[60:61], vcc")
    a.v("buffer_store_dwordx4 v[104:107], v6, s[64:67], s58 offen sc1", "g")
    a("s_mov_b64 exec, s[60:61]")
    a("s_nop 4")
    def S(X, k): return 40 + 8 * X + 2 * k
    seqs = []
    for X in range(2):
        CF = 20 + 10 * X; l2 = vr(CF + 2, 2); L = []
        for m in range(16):
            i, rr = m >> 1, 2 * (m & 1)
            ure, uim = vr(acc(i, X) + rr, 2), vr(acc(i, 2 + X) + rr, 2)
            sre, sim, t1, t2 = (vr(S(X, k), 2) for k in range(4))
            if m == 0:
                L += ["v_mov_b32 v%d, v%d" % (S(X, 0), acc(i, X) + rr), "v_mov_b32 v%d, v%d" % (S(X, 0) + 1, acc(i, X) + rr + 1),
                      "v_mov_b32 v%d, v%d" % (S(X, 1), acc(i, 2 + X) + rr), "v_mov_b32 v%d, v%d" % (S(X, 1) + 1, acc(i, 2 + X) + rr + 1)]
                continue
            L.append("v_pk_fma_f32 %s, %s, %s, %s op_sel:[0,1,0] op_sel_hi:[1,1,1] neg_lo:[0,1,0] neg_hi:[0,1,0]" % (t1, sim, l2, ure))
            L.append("v_pk_fma_f32 %s, %s, %s, %s op_sel:[0,1,0] op_sel_hi:[1,1,1]" % (t2, sre, l2, uim))
            L.append("v_pk_fma_f32 %s, %s, %s, %s op_sel:[0,0,0] op_sel_hi:[1,0,1]" % (sre, sre, l2, t1))
            L.append("v_pk_fma_f32 %s, %s, %s, %s op_sel:[0,0,0] op_sel_hi:[1,0,1]" % (sim, sim, l2, t2))
        seqs.append(L)
    a.emit(merge(seqs))
    for X in range(2):
        CF = 20 + 10 * X
        Er, Or_, Ei, Oi = S(X, 0), S(X, 0) + 1, S(X, 1), S(X, 1) + 1
        g = 56 + 2 * X
        a("v_fma_f32 v%d, v%d, v%d, v%d" % (g, CF, Er, Or_))
        a("v_fma_f32 v%d, v%d, v%d, v%d" % (g + 1, CF, Ei, Oi))
        a("v_fma_f32 v%d, -v%d, v%d, v%d" % (g, CF + 1, Ei, g))
        a("v_fma_f32 v%d, v%d, v%d, v%d" % (g + 1, CF + 1, Er, g + 1))
    a.stamp(4)
    SCR = 32768
    a("v_lshrrev_b32 v60, 4, v0")
    a("s_lshl_b32 s58, s50, 2")
    a("v_add_u32 v61, s58, v60")
    a("v_lshlrev_b32 v62, 9, v61")
    a("v_and_b32 v63, 15, v0")
    a("s_lshl_b32 s58, s51, 5")
    a("v_add_u32 v63, s58, v63")
    a("v_lshlrev_b32 v63, 3, v63")
    a("v_add_u32 v63, %d, v63" % SCR)
    a("v_add_u32 v62, v62, v63")
    a("ds_write_b64 v62, v[56:57]")
    a("ds_write_b64 v62, v[58:59] offset:128")
    a("s_waitcnt lgkmcnt(0)")
    a("s_barrier")
    for X in range(2):
        for s in range(8):
            a("ds_read_b64 %s, v63 offset:%d" % (vr(64 + 16 * X + 2 * s, 2), s * 512 + X * 128))
    a("s_waitcnt lgkmcnt(0)")
    for s in range(1, 8):
        for X in range(2):
            CF = 20 + 10 * X; g = 56 + 2 * X; ag = 64 + 16 * X
            pr, pi = (ag, ag + 1) if s == 1 else (g, g + 1)
            t = 96 + 2 * X
            a("v_fma_f32 v%d, -v%d, v%d, v%d" % (t, CF + 5, pi, ag + 2 * s))
            a("v_fma_f32 v%d, v%d, v%d, v%d" % (t + 1, CF + 5, pr, ag + 2 * s + 1))
            a("v_fma_f32 v%d, v%d, v%d, v%d" % (g, CF + 4, pr, t))
            a("v_fma_f32 v%d, v%d, v%d, v%d" % (g + 1, CF + 4, pi, t + 1))
    Ls = a.newlabel("La_nopub")
    a("v_subrev_u32 v62, %d, v63" % SCR)
    a("v_lshlrev_b32 v62, 1, v62")
    a("s_cmp_lg_u32 s50, 0")
    a("s_cbranch_scc1 %s" % Ls)
    a("s_lshl_b32 s58, s33, 3")
    a("s_add_u32 s58, s58, s32")
    a("s_lshl_b32 s58, s58, 10")
    a("s_add_u32 s58, s58, %d" % WS_AGG)
    a("v_mov_b32 v40, v56"); a("v_mov_b32 v41, v57"); a("v_mov_b32 v42, s91"); a("v_mov_b32 v43, s91")
    a("v_mov_b32 v44, v58"); a("v_mov_b32 v45, v59"); a("v_mov_b32 v46, s91"); a("v_mov_b32 v47, s91")
    a("v_cmp_gt_u32 vcc, 16, v0")
    a("s_and_saveexec_b64 s[60:61], vcc")
    a("buffer_store_dwordx4 v[40:43], v62, s[64:67], s58 offen sc1")
    a("buffer_store_dwordx4 v[44:47], v62, s[64:67], s58 offen offset:256 sc1")
    a("s_mov_b64 exec, s[60:61]")
    a.label(Ls)
    a.stamp(5)
    for r in range(56, 60): a("v_mov_b32 v%d, 0" % r)
    Lc = a.newlabel("La_nocarry")
    a("s_cmp_eq_u32 s32, 0")
    a("s_cbranch_scc1 %s" % Lc)
    GR = [2, 6, 10, 14, 40, 44, 48, 52, 100, 104, 108, 112, 116, 120]
    a("s_lshl_b32 s58, s33, 13")
    a("s_add_u32 s58, s58, %d" % WS_AGG)
    a("s_mov_b32 s63, 0")
    Lp = a.newlabel("La_poll"); Lq = a.newlabel("La_polldone"); Lk = a.newlabel("La_chk")
    a.label(Lp)
    a("s_mov_b32 s59, s58")
    for cp in range(7):
        a("buffer_load_dwordx4 %s, v62, s[64:67], s59 offen sc1" % vr(GR[2 * cp], 4))
        a("buffer_load_dwordx4 %s, v62, s[64:67], s59 offen offset:256 sc1" % vr(GR[2 * cp + 1], 4))
        if cp < 6:
            a("s_add_u32 s59, s59, 1024")
            a("s_cmp_gt_u32 s32, %d" % (cp + 1))
            a("s_cbranch_scc0 %s" % Lk)
    a.label(Lk)
    a("s_waitcnt vmcnt(0)")
    a("v_mov_b32 v96, 0")
    Lk2 = a.newlabel("La_chk2")
    for cp in range(7):
        a("v_xor_b32 v97, s91, v%d" % (GR[2 * cp] + 2))
        a("v_xor_b32 v98, s91, v%d" % (GR[2 * cp + 1] + 2))
        a("v_or3_b32 v96, v96, v97, v98")
        if cp < 6:
            a("s_cmp_gt_u32 s32, %d" % (cp + 1))
            a("s_cbranch_scc0 %s" % Lk2)
    a.label(Lk2)
    a("v_cmp_ne_u32 vcc, 0, v96")
    a("s_add_u32 s63, s63, 1")
    a("s_cbranch_vccz %s" % Lq)
    a("s_sleep %d" % cfg["sleep"])
    a("s_cmp_lt_u32 s63, 0x100000")
    a("s_cbranch_scc1 %s" % Lp)
    a.label(Lq)
    for cp in range(7):
        for X in range(2):
            CF = 20 + 10 * X; g = 56 + 2 * X; ag = GR[2 * cp + X]; t = 96 + 2 * X
            a("v_fma_f32 v%d, -v%d, v%d, v%d" % (t, CF + 7, g + 1, ag))
            a("v_fma_f32 v%d, v%d, v%d, v%d" % (t + 1, CF + 7, g, ag + 1))
            a("v_fma_f32 v%d, v%d, v%d, v%d" % (g, CF + 6, g, t))
            a("v_fma_f32 v%d, v%d, v%d, v%d" % (g + 1, CF + 6, g + 1, t + 1))
        if cp < 6:
            a("s_cmp_gt_u32 s32, %d" % (cp + 1))
            a("s_cbranch_scc0 %s" % Lc)
    a.label(Lc)
    a.stamp(7)
    for X in range(2):
        a("v_mov_b32 v%d, v%d" % (40 + 8 * X, 56 + 2 * X)); a("v_mov_b32 v%d, v%d" % (41 + 8 * X, 57 + 2 * X))
    for s in range(7):
        for X in range(2):
            CF = 20 + 10 * X; g = 56 + 2 * X; ag = 64 + 16 * X; t = 96 + 2 * X
            a("v_fma_f32 v%d, -v%d, v%d, v%d" % (t, CF + 5, g + 1, ag + 2 * s))
            a("v_fma_f32 v%d, v%d, v%d, v%d" % (t + 1, CF + 5, g, ag + 2 * s + 1))
            a("v_fma_f32 v%d, v%d, v%d, v%d" % (g, CF + 4, g, t))
            a("v_fma_f32 v%d, v%d, v%d, v%d" % (g + 1, CF + 4, g + 1, t + 1))
        a("v_cmp_lt_u32 vcc, %d, v61" % s)
        a("s_nop 1")
        for X in range(2):
            g = 56 + 2 * X
            a("v_cndmask_b32 v%d, v%d, v%d, vcc" % (40 + 8 * X, 40 + 8 * X, g))
            a("v_cndmask_b32 v%d, v%d, v%d, vcc" % (41 + 8 * X, 41 + 8 * X, g + 1))
    seqs = []
    for X in range(2):
        CF = 20 + 10 * X; L = []
        pr, pi = 40 + 8 * X, 41 + 8 * X
        for tt in range(32):
            i, r = tt >> 2, tt & 3
            ur, ui = acc(i, X) + r, acc(i, 2 + X) + r
            L += ["v_fmac_f32 v%d, v%d, v%d" % (ur, CF, pr), "v_fmac_f32 v%d, v%d, v%d" % (ui, CF, pi),
                  "v_fma_f32 v%d, -v%d, v%d, v%d" % (ur, CF + 1, pi, ur), "v_fmac_f32 v%d, v%d, v%d" % (ui, CF + 1, pr)]
            pr, pi = ur, ui
        seqs.append(L)
    a.emit(merge(seqs))
    a.stamp(8)
    a("s_lshl_b32 s58, s32, 1")
    a("s_add_u32 s58, s58, s50")
    a("s_lshl_b32 s58, s58, 7")
    a("s_lshl_b32 s59, s33, 2")
    a("s_add_u32 s58, s58, s59")
    a("s_lshl_b32 s59, s51, 1")
    a("s_add_u32 s58, s58, s59")
    a("s_lshl_b32 s58, s58, 12")
    a("s_add_u32 s58, s58, %d" % WS_H)
    a("v_lshlrev_b32 v62, 4, v0")
    a("v_xor_b32 v63, 64, v62")
    for X in range(2):
        CF = 20 + 10 * X; cf = vr(CF + 8, 2)
        for q in range(4):
            hre, him = 64 + 8 * (q & 1), 68 + 8 * (q & 1)
            for half in range(2):
                i = 2 * q + half
                for pp in range(2):
                    sre, sim = vr(acc(i, X) + 2 * pp, 2), vr(acc(i, 2 + X) + 2 * pp, 2)
                    t1, t2 = vr(96, 2), vr(98, 2)
                    a("v_pk_mul_f32 %s, %s, %s op_sel:[0,1] op_sel_hi:[1,1]" % (t1, sim, cf))
                    a("v_pk_mul_f32 %s, %s, %s op_sel:[0,1] op_sel_hi:[1,1]" % (t2, sre, cf))
                    a("v_pk_fma_f32 %s, %s, %s, %s op_sel:[0,0,0] op_sel_hi:[1,0,1] neg_lo:[0,0,1] neg_hi:[0,0,1]" % (t1, sre, cf, t1))
                    a("v_pk_fma_f32 %s, %s, %s, %s op_sel:[0,0,0] op_sel_hi:[1,0,1] neg_lo:[1,0,1] neg_hi:[1,0,1]" % (t2, sim, cf, t2))
                    a("v_cvt_pk_bf16_f32 v%d, v96, v97" % (hre + 2 * half + pp))
                    a("v_cvt_pk_bf16_f32 v%d, v98, v99" % (him + 2 * half + pp))
            va = 62 + (q & 1)
            a("s_add_u32 s59, s58, %d" % (X * 4096 + q * 1024))
            a.v("buffer_store_dwordx4 %s, v%d, s[64:67], s59 offen sc1" % (vr(hre, 4), va), "h")
            a("s_add_u32 s59, s59, %d" % (64 * 4096))
            a.v("buffer_store_dwordx4 %s, v%d, s[64:67], s59 offen sc1" % (vr(him, 4), va), "h")
    a("s_lshl_b32 s58, s32, 4")
    a("s_add_u32 s58, s58, s33")
    a("s_lshl_b32 s58, s58, 7")
    a("s_lshl_b32 s59, s35, 2")
    a("s_add_u32 s58, s58, s59")
    a("s_add_u32 s58, s58, %d" % WS_HF)
    a.stamp(10)
    a.wait_all()
    flag_store(a, "s58", 96)
    a.stamp(11)
```

```python
from lib import *
import stage1
from stage1 import CFG, flag_store, poll_tags, merge, rnd_inplace, LOG2E, dma_x, adv_x, init_x, x_frag_addr, xread, pf_w

def gen_B2(a):
    cfg = CFG
    NS = 32
    def acc1(i, j): return 128 + (i * 4 + j) * 4
    def acc2(i, dt): return 64 + (i * 2 + dt) * 4
    def fx(buf, i): return ar(buf * 48 + i * 4, 4)
    def fw(buf, j, half=None):
        b = buf * 48 + 32 + j * 4
        return ar(b, 4) if half is None else ar(b + 2 * half, 2)
    WB = 98304
    a.c("---- B type (two passes)")
    a("s_mov_b32 s12, s72"); a("s_and_b32 s13, s73, 0xffff"); a("s_mov_b32 s14, 6291456"); a("s_mov_b32 s15, 0x20000")
    a("v_lshrrev_b32 v4, 3, v0"); a("v_lshlrev_b32 v4, 11, v4")
    a("v_and_b32 v5, 7, v0"); a("v_lshrrev_b32 v6, 4, v0"); a("v_xor_b32 v5, v5, v6"); a("v_lshlrev_b32 v5, 4, v5")
    a("v_add_u32 v2, v4, v5"); a("v_xor_b32 v3, 64, v2")
    a("s_lshl_b32 s36, s32, 8"); a("s_lshl_b32 s37, s35, 6"); a("s_add_u32 s36, s36, s37"); a("s_lshl_b32 s36, s36, 11")
    for p in range(8): a("s_add_u32 s%d, s36, %d" % (16 + p, 8 * p * 2048 - (p & 3) * 1024))
    a("v_lshrrev_b32 v4, 3, v0"); a("v_mul_u32_u24 v4, 6144, v4")
    a("v_and_b32 v5, 7, v0"); a("v_bfe_u32 v6, v0, 4, 1"); a("v_lshlrev_b32 v6, 1, v6"); a("v_xor_b32 v5, v5, v6"); a("v_lshlrev_b32 v5, 4, v5")
    a("v_add_u32 v4, v4, v5"); a("v_xor_b32 v5, 64, v4")
    a("s_lshl_b32 s38, s33, 7")
    a("s_lshr_b32 s58, s35, 1"); a("s_add_u32 s58, s58, 1"); a("s_lshl_b32 s58, s58, 11")
    a("s_and_b32 s59, s35, 1"); a("s_mul_i32 s59, s59, %d" % (32 * 6144)); a("s_add_u32 s58, s58, s59"); a("s_add_u32 s58, s58, s38")
    for q in range(4): a("s_add_u32 s%d, s58, %d" % (24 + q, 8 * q * 6144 - q * 1024))
    a("s_mul_i32 s58, s35, %d" % (16 * 6144)); a("s_add_u32 s58, s58, s38")
    for q in range(2): a("s_add_u32 s%d, s58, %d" % (28 + q, 8 * q * 6144 - q * 1024))
    a("s_lshl_b32 s48, s35, 13")
    a("s_lshl_b32 s49, s35, 12"); a("s_add_u32 s49, s49, %d" % WB)
    a("s_lshl_b32 s53, s35, 11"); a("s_add_u32 s53, s53, %d" % WB)
    def dma_w(t):
        st = t % 3
        if t < 16:
            L = ["s_add_u32 m0, s49, %d" % (st * 16384)]
            for q in range(4): L.append(("buffer_load_dwordx4 v%d, s[12:15], s%d offen offset:%d lds" % (4 + (q & 1), 24 + q, q * 1024), "w%d" % t))
        else:
            L = ["s_add_u32 m0, s53, %d" % (st * 16384)]
            for q in range(2): L.append(("buffer_load_dwordx4 v%d, s[12:15], s%d offen offset:%d lds" % (4 + (q & 1), 28 + q, q * 1024), "w%d" % t))
        return L
    def adv_w():
        return ["s_add_u32 s77, s77, %d" % (64 * 6144), "s_cmp_eq_u32 s77, 6291456", "s_cselect_b32 s77, 0, s77",
                "s_add_u32 s12, s68, s77", "s_addc_u32 s13, s69, 0"]
    init_x(a)
    a("s_mov_b32 s68, s12"); a("s_mov_b32 s69, s13")
    a("s_mul_i32 s77, s99, %d" % (64 * 6144))
    a("s_add_u32 s12, s68, s77"); a("s_addc_u32 s13, s69, 0")
    def dx(t):
        return dma_x(t)
    def tile(t): return dma_w(t) + adv_w() + dx(t) + adv_x()
    a.emit(tile(0) + tile(1))
    late = tile(2)
    if not cfg["late2"]:
        a.emit(late); late = []
    pf_w(a, 22, 21)
    x_frag_addr(a)
    a("v_lshrrev_b32 v15, 4, v0"); a("v_lshlrev_b32 v16, 3, v15"); a("v_bfe_u32 v19, v0, 2, 2"); a("v_add_u32 v16, v16, v19"); a("v_lshlrev_b32 v16, 7, v16")
    a("v_bfe_u32 v20, v0, 1, 1"); a("s_lshl_b32 s58, s51, 2"); a("v_add_u32 v20, s58, v20")
    a("v_lshrrev_b32 v19, 1, v19"); a("v_lshlrev_b32 v19, 1, v19"); a("v_xor_b32 v20, v20, v19")
    a("v_and_b32 v15, 1, v15"); a("v_lshlrev_b32 v15, 2, v15"); a("v_xor_b32 v20, v20, v15"); a("v_lshlrev_b32 v20, 4, v20"); a("v_add_u32 v16, v16, v20")
    a("v_and_b32 v20, 1, v0"); a("v_lshlrev_b32 v20, 3, v20"); a("v_add_u32 v16, v16, v20")
    a("v_add_u32 v12, %d, v16" % WB); a("v_xor_b32 v13, 32, v12")
    def reads(t, s, buf):
        X = [xread(t, s, fx(buf, i), i) for i in range(8)]
        st = t % 3; W = []
        for j in range(4 if t < 16 else 2):
            for hf in range(2):
                W.append("ds_read_b64_tr_b16 %s, v%d offset:%d" % (fw(buf, j, hf), 12 + (j & 1), st * 16384 + (j >> 1) * 8192 + s * 4096 + hf * 512))
        return [X[0]] + W + X[1:]
    def mfmas_t(t, s, buf):
        first = (s == 0 and t in (0, 16)); L = []
        for i in range(8):
            if t < 16:
                for j in range(4):
                    d = vr(acc1(i, j), 4); L.append("v_mfma_f32_16x16x32_bf16 %s, %s, %s, %s" % (d, fx(buf, i), fw(buf, j), "0" if first else d))
            else:
                for dt in range(2):
                    d = vr(acc2(i, dt), 4); L.append("v_mfma_f32_16x16x32_bf16 %s, %s, %s, %s" % (d, fw(buf, dt), fx(buf, i), "0" if first else d))
        return L
    def group(st): return tile(st + 3) if st + 3 < NS else []
    a.stamp(1)
    a.wait_vm("x0", "w0")
    a("s_barrier")
    a.stamp(2)
    a.emit(reads(0, 0, 0))
    class L2(Loop):
        def sub(self, step, s, **kw):
            self.mfmas = lambda buf, zero: mfmas_t(step, s, buf)
            self.bar_pos = cfg["bpA"] if step < 16 else cfg["bp2"]
            Loop.sub(self, step, s, **kw)
    lp = L2(a, NS, 2, None, reads, group, lambda t: ("x%d" % t, "w%d" % t), stampv=63, bar_pos=0, read_frac=cfg["rfB"])
    lp.pending = late
    lp.run(0, 16)
    a.stamp(3)
    a("s_add_u32 s91, s91, 1")
    a("s_mov_b32 s54, 0x%x" % LOG2E); a("s_mov_b32 s55, s54"); a("s_mov_b32 s56, 0x358637bd"); a("s_mov_b32 s57, s56")
    a("s_nop 7")
    def phi_tile(b, t):
        L = []
        if cfg["round_qk"]: L += rnd_inplace([b, b + 1, b + 2, b + 3])
        for p in (0, 2): L.append("v_pk_mul_f32 %s, %s, s[54:55]" % (vr(t + p, 2), vr(b + p, 2)))
        for r in range(4): L.append("v_exp_f32 v%d, v%d" % (t + r, t + r))
        for p in (0, 2): L.append("v_pk_add_f32 %s, %s, s[56:57] clamp" % (vr(t + p, 2), vr(t + p, 2)))
        for p in (0, 2): L.append("v_pk_add_f32 %s, %s, %s" % (vr(b + p, 2), vr(b + p, 2), vr(t + p, 2)))
        for r in range(4): L.append("v_max_f32 v%d, v%d, v%d" % (b + r, b + r, t + r))
        return L
    def pack2(b0, b1):
        a("v_cvt_pk_bf16_f32 v%d, v%d, v%d" % (b0, b0, b0 + 1)); a("v_cvt_pk_bf16_f32 v%d, v%d, v%d" % (b0 + 1, b0 + 2, b0 + 3))
        a("v_cvt_pk_bf16_f32 v%d, v%d, v%d" % (b0 + 2, b1, b1 + 1)); a("v_cvt_pk_bf16_f32 v%d, v%d, v%d" % (b0 + 3, b1 + 2, b1 + 3))
    TMP = 24
    for ip in range(4):
        for dt in range(2):
            a.emit(merge([phi_tile(acc1(2 * ip, dt), TMP), phi_tile(acc1(2 * ip + 1, dt), TMP + 4)]))
            pack2(acc1(2 * ip, dt), acc1(2 * ip + 1, dt))
        for et in range(2): pack2(acc1(2 * ip, 2 + et), acc1(2 * ip + 1, 2 + et))
    KV = 32; ONES = 56
    for r in range(4): a("v_mov_b32 v%d, 0x3f803f80" % (ONES + r))
    a("s_nop 1")
    for ip in range(4):
        for dt in range(2):
            for et in range(3):
                d = vr(KV + (dt * 3 + et) * 4, 4)
                B = vr(acc1(2 * ip, 2 + et), 4) if et < 2 else vr(ONES, 4)
                a("v_mfma_f32_16x16x32_bf16 %s, %s, %s, %s" % (d, vr(acc1(2 * ip, dt), 4), B, "0" if ip == 0 else d))
    a.stamp(4)
    SCR = 147456
    a("v_lshlrev_b32 v60, 4, v0"); a("s_mul_i32 s58, s51, 6144"); a("s_add_u32 s58, s58, %d" % SCR); a("v_add_u32 v60, s58, v60")
    a("s_nop 7")
    keep_vm = list(a.vm)
    L1 = a.newlabel("Lb_th0"); L2_ = a.newlabel("Lb_pub_done")
    a("s_cmp_eq_u32 s50, 0"); a("s_cbranch_scc1 %s" % L1)
    for k in range(6): a("ds_write_b128 v60, %s offset:%d" % (vr(KV + 4 * k, 4), k * 1024))
    a("s_waitcnt lgkmcnt(0)"); a("s_barrier")
    a("s_branch %s" % L2_)
    a.label(L1)
    a("s_barrier")
    for k in range(6): a("ds_read_b128 %s, v60 offset:%d" % (vr(acc1(k, 0), 4), k * 1024))
    a("s_waitcnt lgkmcnt(0)")
    for k in range(6):
        for r in range(4): a("v_add_f32 v%d, v%d, v%d" % (KV + 4 * k + r, KV + 4 * k + r, acc1(k, 0) + r))
    a("s_lshl_b32 s58, s33, 3"); a("s_add_u32 s58, s58, s32"); a("s_lshl_b32 s58, s58, 1"); a("s_add_u32 s58, s58, s51")
    a("s_lshl_b32 s62, s58, 7"); a("s_add_u32 s62, s62, %d" % WS_KVF)
    a("s_mul_i32 s58, s58, %d" % KVP_HEAD); a("s_add_u32 s58, s58, %d" % WS_KVP)
    a("v_lshlrev_b32 v61, 4, v0")
    for dt in range(2):
        for et in range(2):
            a("buffer_store_dwordx4 %s, v61, s[64:67], s58 offen offset:%d sc1" % (vr(KV + (dt * 3 + et) * 4, 4), (dt * 2 + et) * 1024))
    a("s_add_u32 s59, s58, 4096"); a("v_and_b32 v62, 15, v0"); a("v_cmp_eq_u32 vcc, 0, v62"); a("s_and_saveexec_b64 s[60:61], vcc")
    for dt in range(2): a("buffer_store_dwordx4 %s, v0, s[64:67], s59 offen offset:%d sc1" % (vr(KV + (dt * 3 + 2) * 4, 4), dt * 64))
    a("s_mov_b64 exec, s[60:61]")
    a("s_waitcnt vmcnt(0)")
    flag_store(a, "s62", 60)
    a.label(L2_)
    a.vm = keep_vm
    a.lds = None
    a.stamp(5)
    lp.run(16, NS)
    a.stamp(6)
    a("s_lshl_b32 s58, s33, 3"); a("s_lshl_b32 s59, s50, 2"); a("s_add_u32 s58, s58, s59"); a("s_lshl_b32 s58, s58, 1"); a("s_add_u32 s58, s58, s51")
    a("s_lshl_b32 s62, s58, 7"); a("s_add_u32 s62, s62, %d" % WS_KVF)
    a("v_and_b32 v61, 3, v0"); a("v_lshlrev_b32 v61, 8, v61")
    poll_tags(a, ["buffer_load_dword v60, v61, s[64:67], s62 offen sc1"], [60], 62)
    a.stamp(7)
    a("s_mul_i32 s58, s58, %d" % KVP_HEAD); a("s_add_u32 s58, s58, %d" % WS_KVP)
    a("v_lshlrev_b32 v61, 4, v0"); a("v_lshrrev_b32 v62, 4, v0"); a("v_lshlrev_b32 v62, 4, v62")
    def part(p, dt, et): return acc1(2 * p, dt * 2 + et) if et < 2 else acc1(2 * p + 1, dt)
    for p in range(4):
        for k in range(4):
            a.v("buffer_load_dwordx4 %s, v61, s[64:67], s58 offen offset:%d sc1" % (vr(acc1(2 * p, k), 4), k * 1024), "p")
        a("s_add_u32 s59, s58, 4096")
        for dt in range(2):
            a.v("buffer_load_dwordx4 %s, v62, s[64:67], s59 offen offset:%d sc1" % (vr(acc1(2 * p + 1, dt), 4), dt * 64), "p")
        if p < 3: a("s_add_u32 s58, s58, %d" % (2 * KVP_HEAD))
    for i in range(8):
        a.emit(merge([phi_tile(acc2(i, 0), TMP), phi_tile(acc2(i, 1), TMP + 4)]))
        pack2(acc2(i, 0), acc2(i, 1))
    a.wait_vm("p")
    for dt in range(2):
        for et in range(3):
            for r in range(4):
                d = KV + (dt * 3 + et) * 4 + r
                a("v_add_f32 v%d, v%d, v%d" % (d, part(0, dt, et) + r, part(1, dt, et) + r))
                a("v_add_f32 v%d, v%d, v%d" % (part(2, dt, et) + r, part(2, dt, et) + r, part(3, dt, et) + r))
            for r in range(4):
                d = KV + (dt * 3 + et) * 4 + r
                a("v_add_f32 v%d, v%d, v%d" % (d, d, part(2, dt, et) + r))
    a.stamp(8)
    a("v_lshlrev_b32 v60, 4, v0")
    a("s_mul_i32 s58, s35, 6144"); a("s_add_u32 s58, s58, 0"); a("v_add_u32 v61, s58, v60")
    a("s_xor_b32 s59, s35, 2"); a("s_mul_i32 s59, s59, 6144"); a("v_add_u32 v62, s59, v60")
    a("s_barrier")
    for k in range(6): a("ds_write_b128 v61, %s offset:%d" % (vr(KV + 4 * k, 4), k * 1024))
    a("s_waitcnt lgkmcnt(0)"); a("s_barrier")
    for k in range(6): a("ds_read_b128 %s, v62 offset:%d" % (vr(acc1(k, 0), 4), k * 1024))
    a("s_waitcnt lgkmcnt(0)")
    for k in range(6):
        for r in range(4): a("v_add_f32 v%d, v%d, v%d" % (KV + 4 * k + r, KV + 4 * k + r, acc1(k, 0) + r))
    AKV = 20
    for et in range(3):
        for dt in range(2):
            b = KV + (dt * 3 + et) * 4
            a("v_cvt_pk_bf16_f32 v%d, v%d, v%d" % (AKV + et * 4 + 2 * dt, b, b + 1)); a("v_cvt_pk_bf16_f32 v%d, v%d, v%d" % (AKV + et * 4 + 2 * dt + 1, b + 2, b + 3))
    a.stamp(9)
    a("s_lshl_b32 s58, s32, 1"); a("s_add_u32 s58, s58, s50"); a("s_lshl_b32 s58, s58, 4"); a("s_add_u32 s58, s58, s33"); a("s_lshl_b32 s58, s58, 14")
    a("s_lshl_b32 s59, s51, 10"); a("s_add_u32 s58, s58, s59"); a("s_add_u32 s58, s58, %d" % WS_O)
    a("v_lshlrev_b32 v60, 4, v0")
    a("s_nop 0")
    for i in range(8):
        for et in range(3):
            a("v_mfma_f32_16x16x32_bf16 %s, %s, %s, 0" % (vr(acc1(i, et), 4), vr(AKV + et * 4, 4), vr(acc2(i, 0), 4)))
    a("s_nop 4")
    for i in range(8):
        n0, n1, dn, of = acc1(i, 0), acc1(i, 1), acc1(i, 2), acc1(i, 3)
        if cfg["round_num"]:
            a.emit(rnd_inplace([n0, n0 + 1, n0 + 2, n0 + 3, n1, n1 + 1, n1 + 2, n1 + 3]))
            a("v_cvt_pk_bf16_f32 v%d, v%d, v%d" % (dn, dn, dn)); a("v_lshlrev_b32 v%d, 16, v%d" % (dn, dn))
        a("v_add_f32 v%d, s56, v%d" % (dn, dn)); a("v_rcp_f32 v%d, v%d" % (dn, dn)); a("s_nop 0")
        for r in range(4): a("v_mul_f32 v%d, v%d, v%d" % (n0 + r, n0 + r, dn))
        for r in range(4): a("v_mul_f32 v%d, v%d, v%d" % (n1 + r, n1 + r, dn))
        a("v_cvt_pk_bf16_f32 v%d, v%d, v%d" % (of, n0, n0 + 1)); a("v_cvt_pk_bf16_f32 v%d, v%d, v%d" % (of + 1, n0 + 2, n0 + 3))
        a("v_cvt_pk_bf16_f32 v%d, v%d, v%d" % (of + 2, n1, n1 + 1)); a("v_cvt_pk_bf16_f32 v%d, v%d, v%d" % (of + 3, n1 + 2, n1 + 3))
        if i >= 2 and i % 2 == 0: a("s_add_u32 s58, s58, 4096")
        a.v("buffer_store_dwordx4 %s, v60, s[64:67], s58 offen offset:%d sc1" % (vr(of, 4), (i % 2) * 2048), "o")
    a("s_lshl_b32 s58, s32, 4"); a("s_add_u32 s58, s58, s33"); a("s_lshl_b32 s58, s58, 7"); a("s_lshl_b32 s59, s35, 2"); a("s_add_u32 s58, s58, s59")
    a("s_add_u32 s58, s58, %d" % WS_OF)
    a.stamp(10)
    a.wait_all()
    flag_store(a, "s58", 60)
    a.stamp(11)
```

```python
from lib import *
import stage1
from stage1 import CFG, flag_store, poll_tags, merge, rnd_inplace, cmulL, LOG2E
NSTEP = 16
WB = 98304

def gen_U(a):
    cfg = CFG
    ACC0 = 96
    RE, IM, KK, VV, QQ = 0, 2, 4, 6, 8
    def acc(i, j): return ACC0 + (i * 10 + j) * 4
    def fx(buf, i): return ar(buf * 56 + i * 4, 4)
    def fb(buf, j): return ar(buf * 56 + 16 + j * 4, 4)
    def fw(buf, j, half=None):
        b = buf * 56 + 32 + j * 4
        return ar(b, 4) if half is None else ar(b + 2 * half, 2)
    a("s_mov_b32 s80, s8"); a("s_mov_b32 s81, s9")
    a("s_and_b32 s36, s33, 15")
    if cfg["rot"]: a("s_lshl_b32 s76, s36, 7"); a("s_mul_i32 s77, s36, %d" % (64 * 6144))
    else: a("s_mov_b32 s76, 0"); a("s_mov_b32 s77, 0")
    a("s_add_u32 s8, s80, s76"); a("s_addc_u32 s9, s81, 0")
    a("s_cmp_lt_u32 s35, 2")
    a("s_cselect_b32 s68, s68, s70"); a("s_cselect_b32 s69, s69, s71"); a("s_and_b32 s69, s69, 0xffff")
    a("s_add_u32 s12, s68, s76"); a("s_addc_u32 s13, s69, 0"); a("s_mov_b32 s14, 2097152"); a("s_mov_b32 s15, 0x20000")
    a("s_and_b32 s73, s73, 0xffff")
    a("s_add_u32 s20, s72, s77"); a("s_addc_u32 s21, s73, 0"); a("s_mov_b32 s22, 6291456"); a("s_mov_b32 s23, 0x20000")
    a("s_mov_b32 s70, s76")
    a("v_lshrrev_b32 v4, 5, v0"); a("v_lshlrev_b32 v4, 4, v4"); a("v_bfe_u32 v5, v0, 3, 2"); a("v_add_u32 v4, v4, v5")
    a("v_lshlrev_b32 v4, 11, v4")
    a("v_and_b32 v5, 7, v0"); a("v_lshrrev_b32 v12, 4, v0"); a("v_xor_b32 v5, v5, v12"); a("v_lshlrev_b32 v5, 4, v5")
    a("v_add_u32 v2, v4, v5"); a("v_xor_b32 v3, 64, v2")
    a("s_lshl_b32 s36, s32, 8"); a("s_lshl_b32 s37, s35, 6"); a("s_add_u32 s36, s36, s37"); a("s_lshl_b32 s36, s36, 11")
    XS = [24, 25, 26, 27, 28, 29, 44, 45]
    for p in range(8):
        rows = 32 * (p & 1) + 4 * (p >> 1)
        a("s_add_u32 s%d, s36, %d" % (XS[p], rows * 2048 - (p & 3) * 1024))
    a("v_lshrrev_b32 v4, 3, v0"); a("v_lshlrev_b32 v4, 11, v4"); a("v_add_u32 v4, v4, v5"); a("v_xor_b32 v5, 64, v4")
    a("s_lshl_b32 s36, s33, 5"); a("s_and_b32 s37, s35, 1"); a("s_lshl_b32 s37, s37, 4"); a("s_add_u32 s36, s36, s37"); a("s_lshl_b32 s36, s36, 11")
    a("s_mov_b32 s16, s36"); a("s_add_u32 s17, s36, %d" % (8 * 2048 - 1024))
    a("v_lshrrev_b32 v6, 2, v0"); a("v_mul_u32_u24 v6, 6144, v6")
    a("v_and_b32 v7, 3, v0"); a("v_lshrrev_b32 v12, 5, v0"); a("v_lshlrev_b32 v12, 1, v12"); a("v_xor_b32 v7, v7, v12"); a("v_lshlrev_b32 v7, 4, v7")
    a("v_add_u32 v6, v6, v7")
    a("s_mul_i32 s39, s35, 3"); a("s_lshl_b32 s38, s33, 6")
    WS_OFF = [18, 19, 71]
    for q in range(3):
        a("s_add_u32 s58, s39, %d" % q); a("s_lshr_b32 s59, s58, 2"); a("s_and_b32 s58, s58, 3")
        a("s_mul_i32 s58, s58, %d" % (16 * 6144)); a("s_lshl_b32 s59, s59, 11"); a("s_add_u32 s58, s58, s59"); a("s_add_u32 s58, s58, s38")
        a("s_sub_u32 s%d, s58, %d" % (WS_OFF[q], q * 1024))
    a("s_lshl_b32 s48, s35, 13")
    a("s_lshl_b32 s49, s35, 11"); a("s_add_u32 s49, s49, %d" % WB)
    a("s_mul_i32 s52, s35, 3072"); a("s_add_u32 s52, s52, %d" % (WB + 8192))
    def dma_x(t):
        st = t % 3; L = []
        for p in range(8):
            if p % 4 == 0: L.append("s_add_u32 m0, s48, %d" % (st * 32768 + (p // 4) * 4096))
            L.append(("buffer_load_dwordx4 v%d, s[8:11], s%d offen offset:%d lds" % (2 + (p & 1), XS[p], (p & 3) * 1024), "x%d" % t))
        return L
    def dma_w(t):
        st = t % 3
        L = ["s_add_u32 m0, s52, %d" % (st * 20480)]
        for q in range(3): L.append(("buffer_load_dwordx4 v6, s[20:23], s%d offen offset:%d lds" % (WS_OFF[q], q * 1024), "w%d" % t))
        L.append("s_add_u32 m0, s49, %d" % (st * 20480))
        for p in range(2): L.append(("buffer_load_dwordx4 v%d, s[12:15], s%d offen offset:%d lds" % (4 + p, 16 + p, p * 1024), "w%d" % t))
        return L
    def adv_x(): return ["s_add_u32 s76, s76, 128", "s_and_b32 s76, s76, 2047", "s_add_u32 s8, s80, s76", "s_addc_u32 s9, s81, 0"]
    def adv_w():
        return ["s_add_u32 s77, s77, %d" % (64 * 6144), "s_cmp_eq_u32 s77, 6291456", "s_cselect_b32 s77, 0, s77",
                "s_add_u32 s20, s72, s77", "s_addc_u32 s21, s73, 0",
                "s_add_u32 s70, s70, 128", "s_and_b32 s70, s70, 2047", "s_add_u32 s12, s68, s70", "s_addc_u32 s13, s69, 0"]
    def tile(t): return dma_w(t) + adv_w() + dma_x(t) + adv_x()
    a.emit(tile(0))
    GX = 40
    a("s_mov_b32 s84, s88"); a("s_and_b32 s85, s89, 0xffff"); a("s_mov_b32 s86, 2048"); a("s_mov_b32 s87, 0x20000")
    a("v_lshlrev_b32 v7, 5, v0")
    a("s_lshl_b32 s36, s32, 8"); a("s_lshl_b32 s37, s33, 3"); a("s_add_u32 s36, s36, s37"); a("s_lshl_b32 s37, s35, 1"); a("s_add_u32 s36, s36, s37")
    a("s_mov_b32 s90, s36"); a("s_lshl_b32 s36, s36, 11")
    a("s_mov_b32 s40, s80"); a("s_mov_b32 s41, s81"); a("s_mov_b32 s42, 4194304"); a("s_mov_b32 s43, 0x20000")
    for rr in range(2):
        a.v("buffer_load_dwordx4 %s, v7, s[40:43], s36 offen" % vr(GX + 8 * rr, 4), "sm")
        a.v("buffer_load_dwordx4 %s, v7, s[40:43], s36 offen offset:16" % vr(GX + 8 * rr + 4, 4), "sm")
        if rr < 1: a("s_add_u32 s36, s36, 2048")
    a.v("buffer_load_dwordx4 %s, v7, s[84:87], 0 offen" % vr(56, 4), "sm")
    a.v("buffer_load_dwordx4 %s, v7, s[84:87], 0 offen offset:16" % vr(60, 4), "sm")
    a("v_and_b32 v7, 15, v0"); a("s_lshl_b32 s36, s33, 5"); a("v_add_u32 v7, s36, v7"); a("v_lshlrev_b32 v7, 1, v7")
    for k, (lo, hi) in enumerate([(92, 93), (94, 95), (96, 97)]):
        a("s_mov_b32 s84, s%d" % lo); a("s_and_b32 s85, s%d, 0xffff" % hi)
        a.v("buffer_load_ushort v%d, v7, s[84:87], 0 offen" % (64 + 2 * k), "sm")
        a.v("buffer_load_ushort v%d, v7, s[84:87], 0 offen offset:32" % (65 + 2 * k), "sm")
    a.emit(tile(1))
    late = tile(2)
    if not cfg["late2"]:
        a.emit(late); late = []
    stage1.pf_w(a, 19, 18)
    a("v_and_b32 v14, 15, v0"); a("v_lshlrev_b32 v14, 7, v14")
    a("v_lshrrev_b32 v15, 4, v0"); a("v_bfe_u32 v16, v0, 1, 3"); a("v_xor_b32 v15, v15, v16"); a("v_lshlrev_b32 v15, 4, v15")
    a("v_add_u32 v14, v14, v15")
    a("v_add_u32 v8, s48, v14"); a("v_xor_b32 v9, 64, v8"); a("v_add_u32 v10, 0x10000, v8"); a("v_add_u32 v11, 0x10000, v9")
    a("v_add_u32 v12, %d, v14" % WB); a("v_xor_b32 v13, 64, v12")
    a("v_lshrrev_b32 v15, 4, v0"); a("v_lshlrev_b32 v16, 3, v15"); a("v_bfe_u32 v17, v0, 2, 2"); a("v_add_u32 v16, v16, v17")
    a("v_lshlrev_b32 v16, 6, v16")
    a("v_bfe_u32 v17, v0, 1, 1"); a("v_and_b32 v15, 1, v15"); a("v_lshlrev_b32 v15, 1, v15"); a("v_xor_b32 v17, v17, v15")
    a("v_lshlrev_b32 v17, 4, v17"); a("v_add_u32 v16, v16, v17")
    a("v_and_b32 v17, 1, v0"); a("v_lshlrev_b32 v17, 3, v17"); a("v_add_u32 v16, v16, v17")
    a("v_add_u32 v16, %d, v16" % (WB + 8192)); a("v_xor_b32 v17, 32, v16")
    a("s_mov_b32 s54, 0x%x" % LOG2E)
    work = []; w = work.append
    W = 72
    for k in range(8):
        w("v_lshlrev_b32 v%d, 16, v%d" % (W + 2 * k, 56 + k)); w("v_and_b32 v%d, 0xffff0000, v%d" % (W + 2 * k + 1, 56 + k))
    GS = 88; T = 90
    for k in range(8):
        for rr in range(2):
            x = GX + 8 * rr + k; t = T + 3 * rr
            w("v_lshlrev_b32 v%d, 16, v%d" % (t, x)); w("v_and_b32 v%d, 0xffff0000, v%d" % (t + 1, x))
        for rr in range(2):
            t = T + 3 * rr
            w("v_mul_f32 v%d, v%d, v%d" % (t, t, W + 2 * k)); w("v_mul_f32 v%d, v%d, v%d" % (t + 1, t + 1, W + 2 * k + 1))
        for rr in range(2): w("v_cvt_pk_bf16_f32 v%d, v%d, v%d" % (T + 3 * rr + 2, T + 3 * rr, T + 3 * rr + 1))
        for rr in range(2):
            t = T + 3 * rr
            w("v_lshlrev_b32 v%d, 16, v%d" % (t, t + 2)); w("v_and_b32 v%d, 0xffff0000, v%d" % (t + 1, t + 2))
        for rr in range(2):
            t = T + 3 * rr
            w("v_add_f32 v%d, v%d, v%d" % (GS + rr, t, t + 1) if k == 0 else "v_add_f32 v%d, v%d, v%d" % (GS + rr, GS + rr, t))
        if k > 0:
            for rr in range(2): w("v_add_f32 v%d, v%d, v%d" % (GS + rr, GS + rr, T + 3 * rr + 1))
    for dpp in ["row_shr:1", "row_shr:2", "row_shr:4", "row_shr:8", "row_bcast:15 row_mask:0xa", "row_bcast:31 row_mask:0xc"]:
        for rr in range(2):
            if "shr" in dpp: w("v_add_f32_dpp v%d, v%d, v%d %s row_mask:0xf bank_mask:0xf bound_ctrl:0" % (GS + rr, GS + rr, GS + rr, dpp))
            else: w("v_add_f32_dpp v%d, v%d, v%d %s bank_mask:0xf" % (GS + rr, GS + rr, GS + rr, dpp))
        w("s_nop 0")
    def unpack2():
        w("v_cvt_pk_bf16_f32 v90, v88, v89"); w("v_lshlrev_b32 v88, 16, v90"); w("v_and_b32 v89, 0xffff0000, v90")
    unpack2()
    for rr in range(2): w("v_mul_f32_e64 v%d, -v%d, s54" % (GS + rr, GS + rr))
    for rr in range(2): w("v_exp_f32 v%d, v%d" % (GS + rr, GS + rr))
    w("s_nop 0")
    for rr in range(2): w("v_add_f32 v%d, 1.0, v%d" % (GS + rr, GS + rr))
    for rr in range(2): w("v_rcp_f32 v%d, v%d" % (GS + rr, GS + rr))
    w("s_nop 0")
    unpack2()
    L256 = [38, 92]
    CFS = [20, 28]
    COEF = [36, 94]
    for X in range(2):
        CF = CFS[X]; lre, lim, ldt = 64 + X, 66 + X, 68 + X; t = 40 + 8 * X
        w("v_lshlrev_b32 v%d, 16, v%d" % (lre, lre)); w("v_lshlrev_b32 v%d, 16, v%d" % (lim, lim)); w("v_lshlrev_b32 v%d, 16, v%d" % (ldt, ldt))
        w("v_mul_f32 v%d, s54, v%d" % (ldt, ldt)); w("v_exp_f32 v%d, v%d" % (ldt, ldt)); w("s_nop 0")
        w("v_cvt_pk_bf16_f32 v%d, v%d, v%d" % (ldt, ldt, ldt)); w("v_lshlrev_b32 v%d, 16, v%d" % (ldt, ldt))
        w("v_mul_f32 v%d, v%d, v%d" % (t, ldt, lre)); w("v_mul_f32 v%d, v%d, v%d" % (t + 1, ldt, lim))
        w("v_mul_f32 v%d, s54, v%d" % (t, t)); w("v_exp_f32 v%d, v%d" % (t, t))
        w("v_mul_f32 v%d, 0.15915494, v%d" % (t + 1, t + 1)); w("v_rndne_f32 v%d, v%d" % (t + 2, t + 1))
        w("v_sub_f32 v%d, v%d, v%d" % (t + 1, t + 1, t + 2))
        w("v_cos_f32 v%d, v%d" % (t + 2, t + 1)); w("v_sin_f32 v%d, v%d" % (t + 3, t + 1)); w("s_nop 0")
        w("v_mul_f32 v%d, v%d, v%d" % (CF, t, t + 2)); w("v_mul_f32 v%d, v%d, v%d" % (CF + 1, t, t + 3))
        w("v_add_f32 v%d, -1.0, v%d" % (t, CF))
        w("v_mul_f32 v%d, v%d, v%d" % (t + 2, lre, lre)); w("v_fma_f32 v%d, v%d, v%d, v%d" % (t + 2, lim, lim, t + 2))
        w("v_rcp_f32 v%d, v%d" % (t + 2, t + 2))
        w("v_mul_f32 v%d, v%d, v%d" % (t + 3, t, lre)); w("v_fma_f32 v%d, v%d, v%d, v%d" % (t + 3, CF + 1, lim, t + 3))
        w("v_mul_f32 v%d, v%d, v%d" % (t + 4, t, lim)); w("v_fma_f32 v%d, v%d, v%d, -v%d" % (t + 4, CF + 1, lre, t + 4))
        w("v_mul_f32 v%d, v%d, v%d" % (COEF[X], t + 3, t + 2)); w("v_mul_f32 v%d, v%d, v%d" % (COEF[X] + 1, t + 4, t + 2))
        work += cmulL(CF + 2, CF + 3, CF, CF + 1, CF, CF + 1, t)
        work += cmulL(t + 2, t + 3, CF + 2, CF + 3, CF + 2, CF + 3, t)
        work += cmulL(t + 4, t + 5, t + 2, t + 3, t + 2, t + 3, t)
        work += cmulL(CF + 4, CF + 5, t + 4, t + 5, t + 4, t + 5, t)
        work += cmulL(t + 2, t + 3, CF + 4, CF + 5, CF + 4, CF + 5, t)
        work += cmulL(CF + 6, CF + 7, t + 2, t + 3, t + 2, t + 3, t)
        work += cmulL(t + 2, t + 3, CF + 6, CF + 7, CF + 6, CF + 7, t)
        work += cmulL(L256[X], L256[X] + 1, t + 2, t + 3, t + 2, t + 3, t)
    first, nsl = 1, 26
    per = (len(work) + nsl - 1) // nsl
    def extra(step, s):
        k = (step - first) * 2 + s
        return work[k * per:(k + 1) * per] if k >= 0 else []
    def reads(step, s, buf):
        st = step % 3
        X = ["ds_read_b128 %s, v%d offset:%d" % (fx(buf, i), (8 if st < 2 else 10) + s, (st & 1) * 32768 * (st < 2) + i * 2048) for i in range(4)]
        B = ["ds_read_b128 %s, v%d offset:%d" % (fb(buf, j), 12 + s, st * 20480 + j * 2048) for j in range(4)]
        Wr = []
        for j in (2, 3, 4, 5, 0, 1):
            for hf in range(2):
                Wr.append("ds_read_b64_tr_b16 %s, v%d offset:%d" % (fw(buf, j, hf), 16 + (j & 1), st * 20480 + (j >> 1) * 4096 + s * 2048 + hf * 256))
        return [X[0]] + B + Wr + X[1:]
    def mfmas(buf, zero):
        L = []
        for i in range(4):
            for j in range(10):
                d = vr(acc(i, j), 4); c = "0" if zero else d
                if j < 4:   L.append("v_mfma_f32_16x16x32_bf16 %s, %s, %s, %s" % (d, fx(buf, i), fb(buf, j), c))
                elif j < 8: L.append("v_mfma_f32_16x16x32_bf16 %s, %s, %s, %s" % (d, fx(buf, i), fw(buf, j - 2), c))
                else:       L.append("v_mfma_f32_16x16x32_bf16 %s, %s, %s, %s" % (d, fw(buf, j - 8), fx(buf, i), c))
        return L
    def group(st): return tile(st + 3) if st + 3 < NSTEP else []
    a.stamp(1)
    a.wait_vm("x0", "w0")
    a("s_barrier")
    a.stamp(2)
    a.emit(reads(0, 0, 0))
    lp = Loop(a, NSTEP, 2, mfmas, reads, group, lambda t: ("x%d" % t, "w%d" % t) + (("sm",) if t == 1 else ()), extra=extra, stampv=19,
              bar_pos=cfg["bpU"], read_frac=cfg["rfU"])
    lp.pending = late
    lp.run(0, NSTEP)
    if a.stamp_on:
        a('s_memtime s[98:99]'); a('s_waitcnt lgkmcnt(0)'); a('v_writelane_b32 v19, s98, 16'); a('v_accvgpr_write_b32 a120, v19')
    a.stamp(3)

    a.c("---- stage-1 epilogue")
    a("s_add_u32 s91, s91, 1")
    a("s_mov_b32 s55, s54"); a("s_mov_b32 s56, 0x358637bd"); a("s_mov_b32 s57, s56")
    a("s_lshl_b32 s58, s90, 2"); a("s_add_u32 s58, s58, %d" % WS_G)
    a("v_mov_b32 v6, 0"); a("v_cmp_eq_u32 vcc, 63, v0"); a("s_and_saveexec_b64 s[60:61], vcc")
    a.v("buffer_store_dwordx2 v[88:89], v6, s[64:67], s58 offen sc1", "g")
    a("s_mov_b64 exec, s[60:61]")
    a("s_nop 3")
    def phi_tile(b, t):
        L = []
        if cfg["round_qk"]: L += rnd_inplace([b, b + 1, b + 2, b + 3])
        for p in (0, 2): L.append("v_pk_mul_f32 %s, %s, s[54:55]" % (vr(t + p, 2), vr(b + p, 2)))
        for r in range(4): L.append("v_exp_f32 v%d, v%d" % (t + r, t + r))
        for p in (0, 2): L.append("v_pk_add_f32 %s, %s, s[56:57] clamp" % (vr(t + p, 2), vr(t + p, 2)))
        for p in (0, 2): L.append("v_pk_add_f32 %s, %s, %s" % (vr(b + p, 2), vr(b + p, 2), vr(t + p, 2)))
        for r in range(4): L.append("v_max_f32 v%d, v%d, v%d" % (b + r, b + r, t + r))
        return L
    def pack2(b0, b1):
        a("v_cvt_pk_bf16_f32 v%d, v%d, v%d" % (b0, b0, b0 + 1)); a("v_cvt_pk_bf16_f32 v%d, v%d, v%d" % (b0 + 1, b0 + 2, b0 + 3))
        a("v_cvt_pk_bf16_f32 v%d, v%d, v%d" % (b0 + 2, b1, b1 + 1)); a("v_cvt_pk_bf16_f32 v%d, v%d, v%d" % (b0 + 3, b1 + 2, b1 + 3))
    TMP = 40
    for ip in range(2):
        for dt in range(2):
            a.emit(merge([phi_tile(acc(2 * ip, KK + dt), TMP), phi_tile(acc(2 * ip + 1, KK + dt), TMP + 4)]))
            pack2(acc(2 * ip, KK + dt), acc(2 * ip + 1, KK + dt))
        for et in range(2): pack2(acc(2 * ip, VV + et), acc(2 * ip + 1, VV + et))
    KV = 48; ONES = 72
    for r in range(4): a("v_mov_b32 v%d, 0x3f803f80" % (ONES + r))
    a("s_nop 1")
    for ip in range(2):
        for dt in range(2):
            for et in range(3):
                d = vr(KV + (dt * 3 + et) * 4, 4)
                B = vr(acc(2 * ip, VV + et), 4) if et < 2 else vr(ONES, 4)
                a("v_mfma_f32_16x16x32_bf16 %s, %s, %s, %s" % (d, vr(acc(2 * ip, KK + dt), 4), B, "0" if ip == 0 else d))
    def S(X, k): return 76 + 8 * X + 2 * k if X == 0 else 40 + 2 * k
    seqs = []
    for X in range(2):
        l2 = vr(CFS[X] + 2, 2); L = []
        for m in range(8):
            i, rr = m >> 1, 2 * (m & 1)
            ure, uim = vr(acc(i, RE + X) + rr, 2), vr(acc(i, IM + X) + rr, 2)
            sre, sim, t1, t2 = (vr(S(X, k), 2) for k in range(4))
            if m == 0:
                L += ["v_mov_b32 v%d, v%d" % (S(X, 0), acc(i, RE + X) + rr), "v_mov_b32 v%d, v%d" % (S(X, 0) + 1, acc(i, RE + X) + rr + 1),
                      "v_mov_b32 v%d, v%d" % (S(X, 1), acc(i, IM + X) + rr), "v_mov_b32 v%d, v%d" % (S(X, 1) + 1, acc(i, IM + X) + rr + 1)]
                continue
            L.append("v_pk_fma_f32 %s, %s, %s, %s op_sel:[0,1,0] op_sel_hi:[1,1,1] neg_lo:[0,1,0] neg_hi:[0,1,0]" % (t1, sim, l2, ure))
            L.append("v_pk_fma_f32 %s, %s, %s, %s op_sel:[0,1,0] op_sel_hi:[1,1,1]" % (t2, sre, l2, uim))
            L.append("v_pk_fma_f32 %s, %s, %s, %s op_sel:[0,0,0] op_sel_hi:[1,0,1]" % (sre, sre, l2, t1))
            L.append("v_pk_fma_f32 %s, %s, %s, %s op_sel:[0,0,0] op_sel_hi:[1,0,1]" % (sim, sim, l2, t2))
        seqs.append(L)
    a.emit(merge(seqs))
    AG = 84
    for X in range(2):
        CF = CFS[X]; Er, Or_, Ei, Oi = S(X, 0), S(X, 0) + 1, S(X, 1), S(X, 1) + 1; g = AG + 2 * X
        a("v_fma_f32 v%d, v%d, v%d, v%d" % (g, CF, Er, Or_)); a("v_fma_f32 v%d, v%d, v%d, v%d" % (g + 1, CF, Ei, Oi))
        a("v_fma_f32 v%d, -v%d, v%d, v%d" % (g, CF + 1, Ei, g)); a("v_fma_f32 v%d, v%d, v%d, v%d" % (g + 1, CF + 1, Er, g + 1))
    a.stamp(4)
    KVL, AGL = 32768, 57344
    a("v_lshlrev_b32 v2, 4, v0")
    a("s_mul_i32 s58, s35, 6144"); a("s_add_u32 s58, s58, %d" % KVL); a("v_add_u32 v3, s58, v2")
    for k in range(6): a("ds_write_b128 v3, %s offset:%d" % (vr(KV + 4 * k, 4), k * 1024))
    a("v_lshrrev_b32 v4, 4, v0")
    a("s_lshl_b32 s58, s35, 2"); a("v_add_u32 v5, s58, v4"); a("v_lshlrev_b32 v5, 8, v5")
    a("v_and_b32 v6, 15, v0"); a("v_lshlrev_b32 v6, 3, v6"); a("v_add_u32 v6, %d, v6" % AGL)
    a("v_add_u32 v5, v5, v6")
    a("ds_write_b64 v5, v[84:85]"); a("ds_write_b64 v5, v[86:87] offset:128")
    a("s_waitcnt lgkmcnt(0)")
    a("s_barrier")
    PT = acc(0, KK)
    a("s_lshl_b32 s58, s35, 10"); a("s_add_u32 s58, s58, %d" % KVL); a("v_add_u32 v3, s58, v2")
    for ww in range(4): a("ds_read_b128 %s, v3 offset:%d" % (vr(acc(0, KK) + 4 * ww, 4), ww * 6144))
    for ww in range(4): a("ds_read_b128 %s, v3 offset:%d" % (vr(acc(1, KK) + 4 * ww, 4), ww * 6144 + 4096))
    SGR = [[acc(2, KK) + 2 * s for s in range(8)] + [acc(3, KK) + 2 * s for s in range(8)], [48 + 2 * s for s in range(14)] + [76, 78]]
    for X in range(2):
        for s in range(16): a("ds_read_b64 %s, v6 offset:%d" % (vr(SGR[X][s], 2), s * 256 + X * 128))
    a("s_waitcnt lgkmcnt(0)")
    for base in (acc(0, KK), acc(1, KK)):
        for r in range(4):
            a("v_add_f32 v%d, v%d, v%d" % (base + r, base + r, base + 4 + r)); a("v_add_f32 v%d, v%d, v%d" % (base + 8 + r, base + 8 + r, base + 12 + r))
        for r in range(4): a("v_add_f32 v%d, v%d, v%d" % (base + r, base + r, base + 8 + r))
    a("s_lshl_b32 s58, s33, 3"); a("s_add_u32 s58, s58, s32")
    a("s_lshl_b32 s62, s58, 7"); a("s_lshl_b32 s59, s35, 2"); a("s_add_u32 s62, s62, s59"); a("s_add_u32 s62, s62, %d" % WS_KVF)
    a("s_mul_i32 s58, s58, 6144"); a("s_add_u32 s58, s58, %d" % WS_KVP); a("s_lshl_b32 s59, s35, 10"); a("s_add_u32 s58, s58, s59")
    a("buffer_store_dwordx4 %s, v2, s[64:67], s58 offen sc1" % vr(acc(0, KK), 4))
    Lk = a.newlabel("Lu_no2")
    a("s_cmp_ge_u32 s35, 2"); a("s_cbranch_scc1 %s" % Lk)
    a("s_add_u32 s58, s58, 4096")
    a("buffer_store_dwordx4 %s, v2, s[64:67], s58 offen sc1" % vr(acc(1, KK), 4))
    a.label(Lk)
    TWR = [[40 + 2 * ww for ww in range(4)], [acc(0, KK) + 8 + 2 * ww for ww in range(4)]]
    seqs = []
    for X in range(2):
        CF = CFS[X]; t = 84 + 2 * X; L = []
        for ww in range(4):
            d = TWR[X][ww]; pr, pi = SGR[X][4 * ww], SGR[X][4 * ww] + 1
            for g in range(1, 4):
                ag = SGR[X][4 * ww + g]
                L += ["v_fma_f32 v%d, -v%d, v%d, v%d" % (t, CF + 5, pi, ag), "v_fma_f32 v%d, v%d, v%d, v%d" % (t + 1, CF + 5, pr, ag + 1),
                      "v_fma_f32 v%d, v%d, v%d, v%d" % (d, CF + 4, pr, t), "v_fma_f32 v%d, v%d, v%d, v%d" % (d + 1, CF + 4, pi, t + 1)]
                pr, pi = d, d + 1
        seqs.append(L)
    a.emit(merge(seqs))
    CT = [80, 82]
    seqs = []
    for X in range(2):
        CF = CFS[X]; t = 84 + 2 * X; d = CT[X]; L = []
        pr, pi = TWR[X][0], TWR[X][0] + 1
        for ww in range(1, 4):
            ag = TWR[X][ww]
            L += ["v_fma_f32 v%d, -v%d, v%d, v%d" % (t, CF + 7, pi, ag), "v_fma_f32 v%d, v%d, v%d, v%d" % (t + 1, CF + 7, pr, ag + 1),
                  "v_fma_f32 v%d, v%d, v%d, v%d" % (d, CF + 6, pr, t), "v_fma_f32 v%d, v%d, v%d, v%d" % (d + 1, CF + 6, pi, t + 1)]
            pr, pi = d, d + 1
        seqs.append(L)
    a.emit(merge(seqs))
    a("v_and_b32 v5, 15, v0"); a("v_lshlrev_b32 v5, 4, v5")
    Ls = a.newlabel("Lu_nopub")
    a("s_cmp_lg_u32 s35, 0"); a("s_cbranch_scc1 %s" % Ls)
    a("s_lshl_b32 s58, s33, 3"); a("s_add_u32 s58, s58, s32"); a("s_lshl_b32 s58, s58, 9"); a("s_add_u32 s58, s58, %d" % WS_AGG)
    a("v_mov_b32 v84, v80"); a("v_mov_b32 v85, v81"); a("v_mov_b32 v86, s91"); a("v_mov_b32 v87, s91")
    a("v_mov_b32 v88, v82"); a("v_mov_b32 v89, v83"); a("v_mov_b32 v90, s91"); a("v_mov_b32 v91, s91")
    a("v_cmp_gt_u32 vcc, 16, v0"); a("s_and_saveexec_b64 s[60:61], vcc")
    a("buffer_store_dwordx4 v[84:87], v5, s[64:67], s58 offen sc1")
    a("buffer_store_dwordx4 v[88:91], v5, s[64:67], s58 offen offset:256 sc1")
    a("s_mov_b64 exec, s[60:61]")
    a.label(Ls)
    a("s_waitcnt vmcnt(0)"); a.vm = []
    flag_store(a, "s62", 84)
    a.stamp(5)
    for i in range(4):
        a.emit(merge([phi_tile(acc(i, QQ), 84), phi_tile(acc(i, QQ + 1), 88)]))
        pack2(acc(i, QQ), acc(i, QQ + 1))
    a.stamp(6)
    CAR = [80, 82]
    for r in range(80, 84): a("v_mov_b32 v%d, 0" % r)
    Lc = a.newlabel("Lu_nocarry")
    a("s_cmp_eq_u32 s32, 0"); a("s_cbranch_scc1 %s" % Lc)
    GR = [acc(0, KK), acc(0, KK) + 4] + [acc(1, KK) + 4 * k for k in range(4)] + [acc(i, QQ + 1) for i in range(4)] + [8, 12, 84, 88]
    a("s_lshl_b32 s58, s33, 12"); a("s_add_u32 s58, s58, %d" % WS_AGG)
    a("s_mov_b32 s63, 0")
    Lp = a.newlabel("Lu_poll"); Lq = a.newlabel("Lu_polldone"); Lk = a.newlabel("Lu_chk"); Lk2 = a.newlabel("Lu_chk2")
    a.label(Lp)
    a("s_mov_b32 s59, s58")
    for cp in range(7):
        a("buffer_load_dwordx4 %s, v5, s[64:67], s59 offen sc1" % vr(GR[2 * cp], 4))
        a("buffer_load_dwordx4 %s, v5, s[64:67], s59 offen offset:256 sc1" % vr(GR[2 * cp + 1], 4))
        if cp < 6:
            a("s_add_u32 s59, s59, 512"); a("s_cmp_gt_u32 s32, %d" % (cp + 1)); a("s_cbranch_scc0 %s" % Lk)
    a.label(Lk)
    a("s_waitcnt vmcnt(0)")
    a("v_mov_b32 v16, 0")
    for cp in range(7):
        a("v_xor_b32 v17, s91, v%d" % (GR[2 * cp] + 2)); a("v_xor_b32 v18, s91, v%d" % (GR[2 * cp + 1] + 2)); a("v_or3_b32 v16, v16, v17, v18")
        if cp < 6:
            a("s_cmp_gt_u32 s32, %d" % (cp + 1)); a("s_cbranch_scc0 %s" % Lk2)
    a.label(Lk2)
    a("v_cmp_ne_u32 vcc, 0, v16"); a("s_add_u32 s63, s63, 1"); a("s_cbranch_vccz %s" % Lq)
    a("s_sleep %d" % cfg["sleep"]); a("s_cmp_lt_u32 s63, 0x100000"); a("s_cbranch_scc1 %s" % Lp)
    a.label(Lq)
    for cp in range(7):
        for X in range(2):
            g = CAR[X]; ag = GR[2 * cp + X]; t = 16 + 2 * X; lr, li = L256[X], L256[X] + 1
            a("v_fma_f32 v%d, -v%d, v%d, v%d" % (t, li, g + 1, ag)); a("v_fma_f32 v%d, v%d, v%d, v%d" % (t + 1, li, g, ag + 1))
            a("v_fma_f32 v%d, v%d, v%d, v%d" % (g, lr, g, t)); a("v_fma_f32 v%d, v%d, v%d, v%d" % (g + 1, lr, g + 1, t + 1))
        if cp < 6:
            a("s_cmp_gt_u32 s32, %d" % (cp + 1)); a("s_cbranch_scc0 %s" % Lc)
    a.label(Lc)
    a.stamp(7)
    a("s_lshl_b32 s62, s33, 10"); a("s_add_u32 s62, s62, %d" % WS_KVF)
    a("v_and_b32 v16, 31, v0"); a("v_lshrrev_b32 v17, 2, v16"); a("v_lshlrev_b32 v17, 7, v17"); a("v_and_b32 v16, 3, v16"); a("v_lshlrev_b32 v16, 2, v16")
    a("v_add_u32 v17, v17, v16")
    poll_tags(a, ["buffer_load_dword v16, v17, s[64:67], s62 offen sc1"], [16], 18)
    a("s_lshl_b32 s58, s33, 3"); a("s_lshl_b32 s59, s35, 1"); a("s_add_u32 s58, s58, s59"); a("s_mul_i32 s58, s58, 6144"); a("s_add_u32 s58, s58, %d" % WS_KVP)
    PL = [[acc(0, KK), acc(0, KK) + 4, acc(1, KK), acc(1, KK) + 4, acc(1, KK) + 8, acc(1, KK) + 12],
          [acc(0, QQ + 1), acc(1, QQ + 1), acc(2, QQ + 1), acc(3, QQ + 1), 8, 12]]
    for p in range(2):
        for k in range(6):
            if k == 4: a("s_add_u32 s59, s58, 4096")
            a.v("buffer_load_dwordx4 %s, v2, s[64:67], s%d offen offset:%d sc1" % (vr(PL[p][k], 4), 58 if k < 4 else 59, (k & 3) * 1024), "kvp")
        if p == 0: a("s_add_u32 s58, s58, 6144")
    ST = [84, 86]
    for X in range(2):
        CF = CFS[X]; g = CAR[X]; t = 16 + 2 * X
        for ww in range(3):
            Lw = a.newlabel("Lu_w")
            a("s_cmp_gt_u32 s35, %d" % ww); a("s_cbranch_scc0 %s" % Lw)
            ag = TWR[X][ww]
            a("v_fma_f32 v%d, -v%d, v%d, v%d" % (t, CF + 7, g + 1, ag)); a("v_fma_f32 v%d, v%d, v%d, v%d" % (t + 1, CF + 7, g, ag + 1))
            a("v_fma_f32 v%d, v%d, v%d, v%d" % (g, CF + 6, g, t)); a("v_fma_f32 v%d, v%d, v%d, v%d" % (g + 1, CF + 6, g + 1, t + 1))
            a.label(Lw)
    a("s_lshl_b32 s58, s35, 10"); a("v_add_u32 v88, s58, v6")
    SA = [[48, 50, 52], [54, 56, 58]]
    for X in range(2):
        for g in range(3): a("ds_read_b64 %s, v88 offset:%d" % (vr(SA[X][g], 2), g * 256 + X * 128))
    a("s_waitcnt lgkmcnt(0)")
    for X in range(2):
        a("v_mov_b32 v%d, v%d" % (ST[X], CAR[X])); a("v_mov_b32 v%d, v%d" % (ST[X] + 1, CAR[X] + 1))
    for gq in range(3):
        for X in range(2):
            CF = CFS[X]; g = CAR[X]; t = 16 + 2 * X; ag = SA[X][gq]
            a("v_fma_f32 v%d, -v%d, v%d, v%d" % (t, CF + 5, g + 1, ag)); a("v_fma_f32 v%d, v%d, v%d, v%d" % (t + 1, CF + 5, g, ag + 1))
            a("v_fma_f32 v%d, v%d, v%d, v%d" % (g, CF + 4, g, t)); a("v_fma_f32 v%d, v%d, v%d, v%d" % (g + 1, CF + 4, g + 1, t + 1))
        a("v_cmp_lt_u32 vcc, %d, v4" % gq); a("s_nop 1")
        for X in range(2):
            a("v_cndmask_b32 v%d, v%d, v%d, vcc" % (ST[X], ST[X], CAR[X])); a("v_cndmask_b32 v%d, v%d, v%d, vcc" % (ST[X] + 1, ST[X] + 1, CAR[X] + 1))
    seqs = []
    for X in range(2):
        CF = CFS[X]; L = []; pr, pi = ST[X], ST[X] + 1
        for tt in range(16):
            i, r = tt >> 2, tt & 3
            ur, ui = acc(i, RE + X) + r, acc(i, IM + X) + r
            L += ["v_fmac_f32 v%d, v%d, v%d" % (ur, CF, pr), "v_fmac_f32 v%d, v%d, v%d" % (ui, CF, pi),
                  "v_fma_f32 v%d, -v%d, v%d, v%d" % (ur, CF + 1, pi, ur), "v_fmac_f32 v%d, v%d, v%d" % (ui, CF + 1, pr)]
            pr, pi = ur, ui
        seqs.append(L)
    a.emit(merge(seqs))
    a.stamp(8)
    a("s_lshl_b32 s58, s32, 1"); a("s_lshr_b32 s59, s35, 1"); a("s_add_u32 s58, s58, s59"); a("s_lshl_b32 s58, s58, 7")
    a("s_lshl_b32 s59, s33, 1"); a("s_add_u32 s58, s58, s59"); a("s_lshl_b32 s58, s58, 12")
    a("s_and_b32 s59, s35, 1"); a("s_lshl_b32 s59, s59, 9"); a("s_add_u32 s58, s58, s59"); a("s_add_u32 s58, s58, %d" % WS_H)
    a("v_and_b32 v16, 1, v4"); a("v_lshlrev_b32 v16, 11, v16")
    a("v_lshrrev_b32 v17, 1, v4"); a("v_lshlrev_b32 v17, 8, v17"); a("v_add_u32 v16, v16, v17")
    a("v_and_b32 v17, 15, v0"); a("v_lshlrev_b32 v17, 4, v17"); a("v_add_u32 v16, v16, v17")
    a("v_xor_b32 v17, 64, v16"); a("v_add_u32 v17, 1024, v17")
    for X in range(2):
        cf = vr(COEF[X], 2)
        for u in range(2):
            hre, him = 48 + 8 * u, 52 + 8 * u
            for half in range(2):
                i = 2 * u + half
                for pp in range(2):
                    sre, sim = vr(acc(i, RE + X) + 2 * pp, 2), vr(acc(i, IM + X) + 2 * pp, 2)
                    t1, t2 = vr(84, 2), vr(86, 2)
                    a("v_pk_mul_f32 %s, %s, %s op_sel:[0,1] op_sel_hi:[1,1]" % (t1, sim, cf))
                    a("v_pk_mul_f32 %s, %s, %s op_sel:[0,1] op_sel_hi:[1,1]" % (t2, sre, cf))
                    a("v_pk_fma_f32 %s, %s, %s, %s op_sel:[0,0,0] op_sel_hi:[1,0,1] neg_lo:[0,0,1] neg_hi:[0,0,1]" % (t1, sre, cf, t1))
                    a("v_pk_fma_f32 %s, %s, %s, %s op_sel:[0,0,0] op_sel_hi:[1,0,1] neg_lo:[1,0,1] neg_hi:[1,0,1]" % (t2, sim, cf, t2))
                    a("v_cvt_pk_bf16_f32 v%d, v84, v85" % (hre + 2 * half + pp)); a("v_cvt_pk_bf16_f32 v%d, v86, v87" % (him + 2 * half + pp))
            a("s_add_u32 s59, s58, %d" % (X * 4096))
            a.v("buffer_store_dwordx4 %s, v%d, s[64:67], s59 offen sc1" % (vr(hre, 4), 16 + u), "h")
            a("s_add_u32 s59, s59, %d" % (64 * 4096))
            a.v("buffer_store_dwordx4 %s, v%d, s[64:67], s59 offen sc1" % (vr(him, 4), 16 + u), "h")
    a.stamp(9)
    a.wait_vm("kvp")
    for k in range(6):
        for r in range(4): a("v_add_f32 v%d, v%d, v%d" % (PL[0][k] + r, PL[0][k] + r, PL[1][k] + r))
    a("s_mul_i32 s58, s35, 6144"); a("s_add_u32 s58, s58, %d" % KVL); a("v_add_u32 v3, s58, v2")
    for k in range(6): a("ds_write_b128 v3, %s offset:%d" % (vr(PL[0][k], 4), k * 1024))
    a("s_waitcnt lgkmcnt(0)")
    a("s_barrier")
    a("v_add_u32 v3, %d, v2" % KVL)
    DEAD = [acc(i, j) for i in range(4) for j in range(4)] + [48, 52, 56, 60, 64, 68, 72, 76]
    for ww in range(4):
        for k in range(6): a("ds_read_b128 %s, v3 offset:%d" % (vr(DEAD[ww * 6 + k], 4), ww * 6144 + k * 1024))
    a("s_waitcnt lgkmcnt(0)")
    for k in range(6):
        for r in range(4):
            a("v_add_f32 v%d, v%d, v%d" % (DEAD[k] + r, DEAD[k] + r, DEAD[6 + k] + r)); a("v_add_f32 v%d, v%d, v%d" % (DEAD[12 + k] + r, DEAD[12 + k] + r, DEAD[18 + k] + r))
        for r in range(4): a("v_add_f32 v%d, v%d, v%d" % (DEAD[k] + r, DEAD[k] + r, DEAD[12 + k] + r))
    AKV = 80
    for et in range(3):
        for dt in range(2):
            b = DEAD[dt * 3 + et]
            a("v_cvt_pk_bf16_f32 v%d, v%d, v%d" % (AKV + et * 4 + 2 * dt, b, b + 1)); a("v_cvt_pk_bf16_f32 v%d, v%d, v%d" % (AKV + et * 4 + 2 * dt + 1, b + 2, b + 3))
    a("s_lshl_b32 s58, s32, 1"); a("s_lshr_b32 s59, s35, 1"); a("s_add_u32 s58, s58, s59"); a("s_lshl_b32 s58, s58, 4")
    a("s_lshr_b32 s59, s33, 1"); a("s_add_u32 s58, s58, s59"); a("s_lshl_b32 s58, s58, 14")
    a("s_and_b32 s59, s33, 1"); a("s_lshl_b32 s59, s59, 10"); a("s_add_u32 s58, s58, s59")
    a("s_and_b32 s59, s35, 1"); a("s_lshl_b32 s59, s59, 13"); a("s_add_u32 s58, s58, s59"); a("s_add_u32 s58, s58, %d" % WS_O)
    a("v_bfe_u32 v16, v0, 2, 2"); a("v_lshlrev_b32 v16, 11, v16")
    a("v_lshlrev_b32 v17, 8, v4"); a("v_add_u32 v16, v16, v17")
    a("v_and_b32 v17, 3, v0"); a("v_lshlrev_b32 v17, 4, v17"); a("v_add_u32 v16, v16, v17")
    for i in range(4):
        for et in range(3):
            a("v_mfma_f32_16x16x32_bf16 %s, %s, %s, 0" % (vr(acc(i, KK + et), 4), vr(AKV + et * 4, 4), vr(acc(i, QQ), 4)))
    a("s_nop 7")
    for i in range(4):
        n0, n1, dn, of = acc(i, KK), acc(i, KK + 1), acc(i, KK + 2), acc(i, KK + 3)
        if cfg["round_num"]:
            a.emit(rnd_inplace([n0, n0 + 1, n0 + 2, n0 + 3, n1, n1 + 1, n1 + 2, n1 + 3]))
            a("v_cvt_pk_bf16_f32 v%d, v%d, v%d" % (dn, dn, dn)); a("v_lshlrev_b32 v%d, 16, v%d" % (dn, dn))
        a("v_add_f32 v%d, s56, v%d" % (dn, dn)); a("v_rcp_f32 v%d, v%d" % (dn, dn)); a("s_nop 0")
        for r in range(4): a("v_mul_f32 v%d, v%d, v%d" % (n0 + r, n0 + r, dn))
        for r in range(4): a("v_mul_f32 v%d, v%d, v%d" % (n1 + r, n1 + r, dn))
        a("v_cvt_pk_bf16_f32 v%d, v%d, v%d" % (of, n0, n0 + 1)); a("v_cvt_pk_bf16_f32 v%d, v%d, v%d" % (of + 1, n0 + 2, n0 + 3))
        a("v_cvt_pk_bf16_f32 v%d, v%d, v%d" % (of + 2, n1, n1 + 1)); a("v_cvt_pk_bf16_f32 v%d, v%d, v%d" % (of + 3, n1 + 2, n1 + 3))
        a.v("buffer_store_dwordx4 %s, v16, s[64:67], s58 offen offset:%d sc1" % (vr(of, 4), i * 64), "o")
    a("s_lshl_b32 s58, s32, 5"); a("s_add_u32 s58, s58, s33"); a("s_lshl_b32 s58, s58, 7"); a("s_lshl_b32 s59, s35, 2"); a("s_add_u32 s58, s58, s59")
    a("s_add_u32 s58, s58, %d" % WS_HF)
    a.stamp(10)
    a.wait_all()
    flag_store(a, "s58", 84)
    a.stamp(11)
```

```python
from lib import *
import stage1
from stage1 import flag_store, poll_tags, CFG

NST = 4
X0 = NST * 32768

def gen_PQ(a, isP):
    cfg = CFG
    NQ = cfg["nq"]
    BFIRST = cfg["bfirst"]
    steps = ["y"] * (32 - NQ) if isP else (["b"] * 16 + ["y"] * NQ if BFIRST else ["y"] * NQ + ["b"] * 16)
    NSTEP = len(steps)
    ACCY = 192 if isP else 128
    ACCB = 192
    def accy(dt, tt): return ACCY + (dt * 4 + tt) * 4
    def accb(dt, tt): return ACCB + (dt * 4 + tt) * 4
    def fa(buf, dt, half=None):
        b = buf * 32 + dt * 4
        return ar(b, 4) if half is None else ar(b + 2 * half, 2)
    def fb(buf, tt, half=None):
        b = buf * 32 + 16 + tt * 4
        return ar(b, 4) if half is None else ar(b + 2 * half, 2)
    a.stamp(1)
    a("v_lshlrev_b32 v2, 4, v0")
    a("s_lshl_b32 s16, s35, 12")
    a("s_lshl_b32 s48, s35, 12")
    a("s_add_u32 s49, s48, 16384")
    a("s_mov_b32 s11, 0x20000"); a("s_mov_b32 s15, 0x20000"); a("s_mov_b32 s14, 2097152")
    a("s_lshl_b32 s36, s32, 19"); a("s_add_u32 s36, s36, %d" % WS_H)
    a("s_add_u32 s88, s78, s36"); a("s_addc_u32 s89, s79, 0"); a("s_and_b32 s89, s89, 0xffff")
    a("s_lshl_b32 s90, s32, 1")
    if not isP: a("s_add_u32 s90, s90, %d" % (32 - NQ)); a("s_and_b32 s90, s90, 31")
    a("s_lshl_b32 s76, s90, 14")
    a("s_add_u32 s8, s88, s76"); a("s_addc_u32 s9, s89, 0"); a("s_mov_b32 s10, %d" % (32 * 16384))
    a("s_and_b32 s69, s69, 0xffff"); a("s_and_b32 s71, s71, 0xffff"); a("s_and_b32 s73, s73, 0xffff")
    def set_c():
        return ["s_cmp_lt_u32 s90, 16", "s_cselect_b32 s12, s68, s70", "s_cselect_b32 s13, s69, s71",
                "s_and_b32 s77, s90, 15", "s_lshl_b32 s77, s77, 7", "s_add_u32 s12, s12, s77", "s_addc_u32 s13, s13, 0"]
    a.emit(set_c())
    a("v_lshrrev_b32 v4, 3, v0"); a("v_lshlrev_b32 v4, 11, v4")
    a("v_and_b32 v5, 7, v0"); a("v_lshrrev_b32 v6, 4, v0"); a("v_xor_b32 v5, v5, v6"); a("v_lshlrev_b32 v5, 4, v5")
    a("v_add_u32 v4, v4, v5"); a("v_xor_b32 v5, 64, v4")
    a("s_lshl_b32 s36, s33, 7"); a("s_lshl_b32 s37, s35, 5"); a("s_add_u32 s36, s36, s37"); a("s_lshl_b32 s36, s36, 11")
    for p in range(4): a("s_add_u32 s%d, s36, %d" % (24 + p, 8 * p * 2048 - p * 1024))
    if not isP:
        a("v_lshrrev_b32 v8, 4, v0"); a("v_lshlrev_b32 v6, 11, v8")
        a("v_and_b32 v7, 15, v0"); a("v_lshlrev_b32 v8, 1, v8"); a("v_xor_b32 v7, v7, v8"); a("v_lshlrev_b32 v7, 4, v7")
        a("v_add_u32 v6, v6, v7"); a("v_xor_b32 v7, 128, v6")
        a("s_lshl_b32 s36, s35, 15"); a("s_lshl_b32 s37, s33, 8"); a("s_add_u32 s36, s36, s37")
        for p in range(4): a("s_add_u32 s%d, s36, %d" % (20 + p, 4 * p * 2048 - p * 1024))
        a("s_lshl_b32 s36, s32, 18"); a("s_add_u32 s36, s36, %d" % WS_O)
        a("s_add_u32 s92, s78, s36"); a("s_addc_u32 s93, s79, 0"); a("s_and_b32 s93, s93, 0xffff")
        a("s_lshl_b32 s94, s32, 14")
        a("s_lshl_b32 s95, s32, 17")
    if steps[0] == "b":
        a("s_add_u32 s12, s72, s95"); a("s_addc_u32 s13, s73, 0"); a("s_add_u32 s8, s92, s94"); a("s_addc_u32 s9, s93, 0")
    def stage(t): return t % NST
    def dma_w(t):
        L = ["s_add_u32 m0, s49, %d" % (stage(t) * 32768)]
        for p in range(4):
            if steps[t] == "y": L.append(("buffer_load_dwordx4 v%d, s[12:15], s%d offen offset:%d lds" % (4 + (p & 1), 24 + p, p * 1024), "w%d" % t))
            else:               L.append(("buffer_load_dwordx4 v%d, s[12:15], s%d offen offset:%d lds" % (6 + (p & 1), 20 + p, p * 1024), "w%d" % t))
        return L
    def dma_act(t):
        L = ["s_add_u32 m0, s48, %d" % (stage(t) * 32768)]
        for q in range(4): L.append(("buffer_load_dwordx4 v2, s[8:11], s16 offen offset:%d lds" % (q * 1024), "a%d" % t))
        return L
    def next_w(t):
        if t + 1 >= NSTEP: return []
        if steps[t + 1] == "y":
            if steps[t] == "y": return ["s_add_u32 s90, s90, 1", "s_and_b32 s90, s90, 31"] + set_c()
            return set_c()
        L = [] if steps[t] == "y" else ["s_add_u32 s95, s95, %d" % (64 * 2048), "s_and_b32 s95, s95, 0x1fffff"]
        return L + ["s_add_u32 s12, s72, s95", "s_addc_u32 s13, s73, 0"]
    def next_act(t):
        if t + 1 >= NSTEP: return []
        if steps[t + 1] == "y":
            L = ["s_add_u32 s76, s76, 16384", "s_and_b32 s76, s76, %d" % (32 * 16384 - 1)] if steps[t] == "y" else []
            return L + ["s_add_u32 s8, s88, s76", "s_addc_u32 s9, s89, 0"]
        L = [] if steps[t] == "y" else ["s_add_u32 s94, s94, 16384", "s_and_b32 s94, s94, %d" % (16 * 16384 - 1)]
        return L + ["s_add_u32 s8, s92, s94", "s_addc_u32 s9, s93, 0"]
    for t in range(NST - 1): a.emit(dma_w(t) + next_w(t))
    a.stamp(3)
    a.stamp(4)
    CA, HA = 32, 36
    a("v_and_b32 v14, 15, v0"); a("v_lshlrev_b32 v14, 7, v14")
    a("v_lshrrev_b32 v15, 4, v0"); a("v_bfe_u32 v16, v0, 1, 3"); a("v_xor_b32 v15, v15, v16"); a("v_lshlrev_b32 v15, 4, v15")
    a("v_add_u32 v14, v14, v15")
    a("s_lshl_b32 s52, s50, 13"); a("s_add_u32 s52, s52, 16384")
    a("v_add_u32 v%d, s52, v14" % CA); a("v_xor_b32 v%d, 64, v%d" % (CA + 1, CA))
    for s in range(2): a("v_add_u32 v%d, 0x10000, v%d" % (CA + 2 + s, CA + s))
    a("v_lshrrev_b32 v14, 5, v0"); a("v_lshlrev_b32 v14, 12, v14")
    a("v_bfe_u32 v15, v0, 1, 1"); a("v_lshlrev_b32 v16, 10, v15"); a("v_add_u32 v14, v14, v16")
    a("v_bfe_u32 v16, v0, 4, 1"); a("v_lshlrev_b32 v16, 3, v16"); a("v_bfe_u32 v19, v0, 2, 2"); a("v_add_u32 v16, v16, v19")
    a("v_lshlrev_b32 v15, 2, v15"); a("v_xor_b32 v16, v16, v15"); a("v_lshlrev_b32 v16, 4, v16"); a("v_add_u32 v14, v14, v16")
    a("v_and_b32 v16, 1, v0"); a("v_lshlrev_b32 v16, 3, v16"); a("v_add_u32 v14, v14, v16")
    a("s_lshl_b32 s53, s51, 9")
    a("v_add_u32 v%d, s53, v14" % HA); a("v_xor_b32 v%d, 64, v%d" % (HA + 1, HA))
    for s in range(2): a("v_add_u32 v%d, 0x10000, v%d" % (HA + 2 + s, HA + s))
    WA, OA = 40, 48
    if not isP:
        a("v_lshrrev_b32 v14, 4, v0"); a("v_lshlrev_b32 v15, 2, v14"); a("v_bfe_u32 v16, v0, 2, 2"); a("v_add_u32 v15, v15, v16")
        a("v_and_b32 v16, 7, v15"); a("v_lshlrev_b32 v16, 1, v16"); a("v_lshlrev_b32 v15, 8, v15")
        a("v_bfe_u32 v19, v0, 1, 1"); a("s_lshl_b32 s52, s50, 3"); a("v_add_u32 v19, s52, v19"); a("v_xor_b32 v19, v19, v16")
        a("v_lshlrev_b32 v19, 4, v19"); a("v_add_u32 v15, v15, v19")
        a("v_and_b32 v19, 1, v0"); a("v_lshlrev_b32 v19, 3, v19"); a("v_add_u32 v15, v15, v19")
        a("v_add_u32 v%d, 16384, v15" % WA)
        for dt in range(1, 4): a("v_xor_b32 v%d, %d, v%d" % (WA + dt, dt * 32, WA))
        for dt in range(4): a("v_add_u32 v%d, 0x10000, v%d" % (WA + 4 + dt, WA + dt))
        a("s_lshl_b32 s53, s51, 13"); a("v_add_u32 v%d, s53, v2" % OA); a("v_add_u32 v%d, 0x10000, v%d" % (OA + 1, OA))
    def reads(t, s, buf):
        st = stage(t); so = (st & 1) * 32768; w = st >> 1
        if steps[t] == "y":
            A = ["ds_read_b128 %s, v%d offset:%d" % (fa(buf, dt), CA + 2 * w + s, so + dt * 2048) for dt in range(4)]
            B = []
            for tt in range(4):
                for hf in range(2):
                    B.append("ds_read_b64_tr_b16 %s, v%d offset:%d" % (fb(buf, tt, hf), HA + 2 * w + hf, so + s * 8192 + (2 * (tt & 1)) * 1024 + (tt >> 1) * 256))
            return [A[0]] + B[:2] + A[1:] + B[2:]
        A = []
        for dt in range(4):
            for hf in range(2):
                A.append("ds_read_b64_tr_b16 %s, v%d offset:%d" % (fa(buf, dt, hf), WA + 4 * w + dt, so + s * 8192 + hf * 4096))
        B = ["ds_read_b128 %s, v%d offset:%d" % (fb(buf, tt), OA + w, so + tt * 2048 + s * 1024) for tt in range(4)]
        return [B[0]] + A + B[1:]
    cur = {"t": 0}
    def mfmas_t(t, s, buf):
        first = (s == 0 and (t == 0 or steps[t] != steps[t - 1]))
        L = []
        for tt in range(4):
            for dt in range(4):
                d = vr((accy if steps[t] == "y" else accb)(dt, tt), 4)
                L.append("v_mfma_f32_16x16x32_bf16 %s, %s, %s, %s" % (d, fa(buf, dt), fb(buf, tt), "0" if first else d))
        return L
    TL = 20
    a("v_and_b32 v%d, 15, v0" % TL)
    a("s_lshl_b32 s36, s32, 7"); a("s_lshl_b32 s37, s51, 6"); a("s_add_u32 s36, s36, s37")
    a("v_add_u32 v%d, s36, v%d" % (TL, TL))
    a("v_lshlrev_b32 v22, 2, v%d" % TL)
    a("v_lshrrev_b32 v28, 4, v0"); a("v_lshlrev_b32 v28, 3, v28")
    a("s_lshl_b32 s36, s33, 7"); a("s_lshl_b32 s37, s50, 6"); a("s_add_u32 s36, s36, s37"); a("s_lshl_b32 s36, s36, 1")
    a("v_add_u32 v28, s36, v28")
    if cfg["uni"]:
        a("s_lshr_b32 s36, s32, 1"); a("s_lshl_b32 s36, s36, 12"); a("s_add_u32 s37, s36, %d" % WS_HF)
        a("v_lshrrev_b32 v23, 2, v0"); a("v_lshlrev_b32 v23, 7, v23"); a("v_and_b32 v24, 3, v0"); a("v_lshlrev_b32 v24, 2, v24")
        a("v_add_u32 v23, v23, v24")
        a.stamp(12)
        poll_tags(a, ["buffer_load_dword v24, v23, s[64:67], s37 offen sc1", "buffer_load_dword v25, v23, s[64:67], s37 offen offset:2048 sc1"], [24, 25], 26)
    else:
        a("s_lshr_b32 s36, s32, 1"); a("s_lshl_b32 s36, s36, 11")
        a("s_add_u32 s37, s36, %d" % WS_HF)
        a("s_add_u32 s96, s36, %d" % WS_OF)
        a("v_lshrrev_b32 v23, 2, v0"); a("v_lshlrev_b32 v23, 7, v23"); a("v_and_b32 v24, 3, v0"); a("v_lshlrev_b32 v24, 2, v24")
        a("v_add_u32 v23, v23, v24")
        a.stamp(12)
        if (not isP) and (NQ == 0 or BFIRST):
            poll_tags(a, ["buffer_load_dword v24, v23, s[64:67], s37 offen sc1", "buffer_load_dword v25, v23, s[64:67], s96 offen sc1"], [24, 25], 26)
        else:
            poll_tags(a, ["buffer_load_dword v24, v23, s[64:67], s37 offen sc1"], [24], 26)
    a.stamp(13)
    for t in range(NST - 1): a.emit(dma_act(t) + next_act(t))
    if isP:
        a("s_mov_b32 s84, s80"); a("s_and_b32 s85, s81, 0xffff"); a("s_mov_b32 s86, 4194304"); a("s_mov_b32 s87, 0x20000")
        a("v_lshrrev_b32 v6, 4, v0"); a("v_and_b32 v7, 15, v0"); a("v_xor_b32 v7, v7, v6"); a("v_lshlrev_b32 v7, 4, v7")
        a("v_lshlrev_b32 v6, 11, v6"); a("v_add_u32 v8, v6, v7")
        for k in range(1, 4): a("v_xor_b32 v%d, %d, v8" % (8 + k, k * 64))
        a("s_lshl_b32 s36, s32, 7"); a("s_lshl_b32 s37, s35, 5"); a("s_add_u32 s36, s36, s37"); a("s_lshl_b32 s36, s36, 11")
        a("s_lshl_b32 s37, s33, 8"); a("s_add_u32 s36, s36, s37")
        a("s_lshl_b32 s37, s35, 13"); a("s_add_u32 s37, s37, %d" % X0)
        for p in range(8):
            if p % 4 == 0: a("s_add_u32 m0, s37, %d" % ((p >> 2) * 4096))
            a("s_add_u32 s38, s36, %d" % (4 * p * 2048 - (p & 3) * 1024))
            a.v("buffer_load_dwordx4 v%d, s[84:87], s38 offen offset:%d lds" % (8 + (p & 3), (p & 3) * 1024), "xt")
    G0 = 24
    a("s_mov_b32 s58, %d" % WS_G)
    for tt in range(4): a.v("buffer_load_dword v%d, v22, s[64:67], s58 offen offset:%d sc1" % (G0 + tt, tt * 64), "g")
    pair = ["s_lshl_b32 s58, s32, 3", "s_add_u32 s58, s58, s33"]
    a.emit(pair)
    a("s_lshl_b32 s97, s58, 7"); a("s_lshl_b32 s36, s35, 2"); a("s_add_u32 s97, s97, s36"); a("s_add_u32 s97, s97, %d" % WS_QF)
    a("s_lshl_b32 s40, s58, 16"); a("s_lshl_b32 s36, s35, 14"); a("s_add_u32 s40, s40, s36"); a("s_add_u32 s40, s40, %d" % WS_RST)
    for k in range(1, 4): a("s_add_u32 s%d, s40, %d" % (40 + k, 4096 * k))
    extra = None
    if isP:
        a("s_mov_b32 s84, s82"); a("s_and_b32 s85, s83, 0xffff"); a("s_mov_b32 s86, 2048"); a("s_mov_b32 s87, 0x20000")
        for dt in range(4): a.v("buffer_load_dwordx2 %s, v28, s[84:87], 0 offen offset:%d" % (vr(48 + dt * 2, 2), dt * 32), "g")
        XA = 56
        a("v_and_b32 v14, 15, v0"); a("s_lshl_b32 s36, s51, 6"); a("v_add_u32 v15, s36, v14"); a("v_lshlrev_b32 v15, 8, v15")
        a("v_lshrrev_b32 v16, 5, v0"); a("s_lshl_b32 s36, s50, 3"); a("v_add_u32 v16, s36, v16"); a("v_xor_b32 v16, v16, v14")
        a("v_lshlrev_b32 v16, 4, v16"); a("v_add_u32 v15, v15, v16")
        a("v_bfe_u32 v16, v0, 4, 1"); a("v_lshlrev_b32 v16, 3, v16"); a("v_add_u32 v15, v15, v16")
        a("v_add_u32 v%d, %d, v15" % (XA, X0))
        for dt in range(1, 4): a("v_xor_b32 v%d, %d, v%d" % (XA + dt, dt * 32, XA))
        xr = ["ds_read_b64 %s, v%d offset:%d" % (vr(64 + (dt * 4 + tt) * 2, 2), XA + dt, tt * 4096) for dt in range(4) for tt in range(4)]
        E0 = 128
        work = []
        for dt in range(4):
            D = 112 + 4 * dt
            work += ["v_lshlrev_b32 v%d, 16, v%d" % (D, 48 + 2 * dt), "v_and_b32 v%d, 0xffff0000, v%d" % (D + 1, 48 + 2 * dt),
                     "v_lshlrev_b32 v%d, 16, v%d" % (D + 2, 49 + 2 * dt), "v_and_b32 v%d, 0xffff0000, v%d" % (D + 3, 49 + 2 * dt)]
        for dt in range(4):
            for tt in range(4):
                x = 64 + (dt * 4 + tt) * 2; e = E0 + (dt * 4 + tt) * 4; D = 112 + 4 * dt
                work += ["v_lshlrev_b32 v%d, 16, v%d" % (e, x), "v_and_b32 v%d, 0xffff0000, v%d" % (e + 1, x),
                         "v_lshlrev_b32 v%d, 16, v%d" % (e + 2, x + 1), "v_and_b32 v%d, 0xffff0000, v%d" % (e + 3, x + 1)]
                work += ["v_mul_f32 v%d, v%d, v%d" % (e + r, e + r, D + r) for r in range(4)]
                work += ["v_cvt_pk_bf16_f32 v%d, v%d, v%d" % (x, e, e + 1), "v_cvt_pk_bf16_f32 v%d, v%d, v%d" % (x + 1, e + 2, e + 3)]
                work += ["v_lshlrev_b32 v%d, 16, v%d" % (e, x), "v_and_b32 v%d, 0xffff0000, v%d" % (e + 1, x),
                         "v_lshlrev_b32 v%d, 16, v%d" % (e + 2, x + 1), "v_and_b32 v%d, 0xffff0000, v%d" % (e + 3, x + 1)]
                work += ["v_mul_f32 v%d, v%d, v%d" % (e + r, e + r, G0 + tt) for r in range(4)]
        first = NST + 1
        nsl = 32
        per = (len(work) + nsl - 1) // nsl
        def extra(step, s):
            k = (step - first) * 2 + s
            if "noextra" in cfg.get("dbg", ""): return []
            if k == 0: return xr
            return work[(k - 2) * per:(k - 1) * per] if k >= 2 else []
    def group(st):
        t = st + NST - 1
        if t >= NSTEP: return []
        G = dma_w(t) + next_w(t) + dma_act(t) + next_act(t)
        dbg = cfg.get("dbg", "")
        if "nodma" in dbg: G = [g for g in G if not isinstance(g, tuple)]
        if "nosalu" in dbg: G = [g for g in G if isinstance(g, tuple) or "m0" in g]
        return G
    _group = group
    def group(st):
        G = _group(st)
        if cfg["pfe"] and st == NSTEP - 6:
            G = G + stage1.pf_code_list("LtailP" if isP else "LtailQ", 30, 29, srd=84)
        return G
    def needs(t):
        return ("a%d" % t, "w%d" % t) + (("g", "xt") if t == NST else ())
    a.wait_vm("a0", "w0")
    a("s_barrier")
    a.stamp(6)
    a.emit(reads(0, 0, 0))
    class L2(Loop):
        def sub(self, step, s, **kw):
            self.mfmas = lambda buf, zero: mfmas_t(step, s, buf)
            Loop.sub(self, step, s, **kw)
    lp = L2(a, NSTEP, 2, None, reads, group, needs, extra=extra, stampv=31, bar_pos=cfg['bp2'], read_frac=cfg['rf2'])
    if isP:
        lp.run(0, NSTEP)
        a.label("LtailP")
        a.stamp(7)
        a("s_nop 7")
        for tt in range(4): a("v_add_f32 v%d, v%d, v%d" % (G0 + tt, G0 + tt, G0 + tt))
        for dt in range(4):
            for tt in range(4):
                b = accy(dt, tt); e = 128 + (dt * 4 + tt) * 4; k = dt * 4 + tt
                for r in range(4): a("v_fma_f32 v%d, v%d, v%d, v%d" % (b + r, b + r, G0 + tt, e + r))
                a.v("buffer_store_dwordx4 %s, v2, s[64:67], s%d offen offset:%d sc1" % (vr(b, 4), 40 + (k >> 2), (k & 3) * 1024), "rst")
        a.stamp(8)
        a.wait_all()
        flag_store(a, "s97", 48)
        return
    TO = -1
    if not cfg["uni"] and NQ > 0 and not BFIRST:
        TO = NQ - (NST - 1)
        if TO <= 0: raise ValueError("nq too small")
        lp.run(0, TO)
        lp.sub(TO, 0)
        def hook_o():
            a.stamp(9)
            poll_tags(a, ["buffer_load_dword v50, v23, s[64:67], s96 offen sc1"], [50], 52)
            a.stamp(10)
        lp.sub(TO, 1, hook=hook_o)
    R0 = 64
    def rest_loads():
        return [("buffer_load_dwordx4 %s, v2, s[64:67], s%d offen offset:%d sc1" % (vr(R0 + 4 * k, 4), 40 + (k >> 2), (k & 3) * 1024), "rst") for k in range(16)]
    a("v_mov_b32 v51, 0")
    lp.run(TO + 1, NSTEP - 1)
    lp.pending = lp.pending + [("buffer_load_dword v50, v51, s[64:67], s97 offen sc1", "qf")]
    lp.run(NSTEP - 1, NSTEP)
    a.label("LtailQ")
    a.wait_vm("qf")
    a("v_cmp_ne_u32 vcc, s91, v50")
    Lok = a.newlabel("Lq_ok")
    a("s_cbranch_vccz %s" % Lok)
    poll_tags(a, ["buffer_load_dword v50, v51, s[64:67], s97 offen sc1"], [50], 52)
    a.label(Lok)
    a.vm = []
    for l in rest_loads(): a(l)
    a.stamp(7)
    Le = a.newlabel("Lq_noep")
    a("s_cmp_lg_u32 s32, 15"); a("s_cbranch_scc1 %s" % Le)
    a("s_or_b32 s36, s33, s35"); a("s_cmp_lg_u32 s36, 0"); a("s_cbranch_scc1 %s" % Le)
    a("s_mov_b32 s36, %d" % WS_EP)
    flag_store(a, "s36", 52)
    a.label(Le)
    a("s_mov_b32 s84, s74"); a("s_and_b32 s85, s75, 0xffff"); a("s_mov_b32 s86, 8388608"); a("s_mov_b32 s87, 0x20000")
    a("v_lshlrev_b32 v23, 12, v%d" % TL); a("v_lshlrev_b32 v28, 1, v28"); a("v_add_u32 v23, v23, v28")
    for tt in range(4): a("v_sub_f32 v%d, 1.0, v%d" % (52 + tt, G0 + tt))
    a("v_cvt_pk_bf16_f32 v56, v52, v53"); a("v_cvt_pk_bf16_f32 v57, v54, v55")
    a("v_lshlrev_b32 v52, 16, v56"); a("v_and_b32 v53, 0xffff0000, v56"); a("v_lshlrev_b32 v54, 16, v57"); a("v_and_b32 v55, 0xffff0000, v57")
    for tt in range(4): a("v_add_f32 v%d, v%d, v%d" % (G0 + tt, G0 + tt, G0 + tt))
    for tt in range(4): a("s_mov_b32 s%d, %d" % (92 + tt, tt * 16 * 4096))
    for dt in range(4):
        for tt in range(4):
            b = accb(dt, tt); y = accy(dt, tt); t = 56 + 2 * (tt & 1)
            a("v_cvt_pk_bf16_f32 v%d, v%d, v%d" % (t, b, b + 1)); a("v_cvt_pk_bf16_f32 v%d, v%d, v%d" % (t + 1, b + 2, b + 3))
            a("v_lshlrev_b32 v%d, 16, v%d" % (b, t)); a("v_and_b32 v%d, 0xffff0000, v%d" % (b + 1, t))
            a("v_lshlrev_b32 v%d, 16, v%d" % (b + 2, t + 1)); a("v_and_b32 v%d, 0xffff0000, v%d" % (b + 3, t + 1))
            for p in (0, 2): a("v_pk_mul_f32 %s, %s, v[%d:%d] op_sel_hi:[1,0]" % (vr(b + p, 2), vr(b + p, 2), 52 + (tt & ~1), 53 + (tt & ~1)) if False else
                               "v_mul_f32 v%d, v%d, v%d" % (b + p, b + p, 52 + tt))
            for p in (1, 3): a("v_mul_f32 v%d, v%d, v%d" % (b + p, b + p, 52 + tt))
            a("v_cvt_pk_bf16_f32 v%d, v%d, v%d" % (t, b, b + 1)); a("v_cvt_pk_bf16_f32 v%d, v%d, v%d" % (t + 1, b + 2, b + 3))
            a("v_lshlrev_b32 v%d, 16, v%d" % (b, t)); a("v_and_b32 v%d, 0xffff0000, v%d" % (b + 1, t))
            a("v_lshlrev_b32 v%d, 16, v%d" % (b + 2, t + 1)); a("v_and_b32 v%d, 0xffff0000, v%d" % (b + 3, t + 1))
            if NQ > 0:
                for r in range(4): a("v_fmac_f32 v%d, v%d, v%d" % (b + r, y + r, G0 + tt))
    a.wait_all()
    a.stamp(8)
    for dt in range(4):
        for tt in range(4):
            b = accb(dt, tt); e = R0 + (dt * 4 + tt) * 4
            for r in range(4): a("v_add_f32 v%d, v%d, v%d" % (b + r, b + r, e + r))
            a.v("buffer_store_dwordx4 %s, v23, s[84:87], s%d offen offset:%d%s" % (vr(b, 4), 92 + tt, dt * 64, cfg["outpol"]), "out")
```

```python
from lib import *
import stage1
from stage1 import flag_store, poll_tags, CFG

def ready_poll(a, chunk_s, both):
    a("s_lshl_b32 s36, s%d, 11" % chunk_s)
    a("s_add_u32 s37, s36, %d" % WS_HF); a("s_add_u32 s38, s36, %d" % WS_OF)
    a("v_lshrrev_b32 v23, 2, v0"); a("v_lshlrev_b32 v23, 7, v23"); a("v_and_b32 v24, 3, v0"); a("v_lshlrev_b32 v24, 2, v24"); a("v_add_u32 v23, v23, v24")
    if both: poll_tags(a, ["buffer_load_dword v24, v23, s[64:67], s37 offen sc1", "buffer_load_dword v25, v23, s[64:67], s38 offen sc1"], [24, 25], 26)
    else:    poll_tags(a, ["buffer_load_dword v24, v23, s[64:67], s37 offen sc1"], [24], 26)

def c_frag_lane(a, dst):
    a("v_and_b32 v14, 15, v0"); a("v_lshlrev_b32 v14, 7, v14")
    a("v_lshrrev_b32 v15, 4, v0"); a("v_bfe_u32 v16, v0, 1, 3"); a("v_xor_b32 v15, v15, v16"); a("v_lshlrev_b32 v15, 4, v15")
    a("v_add_u32 v%d, v14, v15" % dst)
def h_frag_lane(a, dst):
    a("v_lshrrev_b32 v14, 5, v0"); a("v_lshlrev_b32 v14, 12, v14")
    a("v_bfe_u32 v15, v0, 1, 1"); a("v_lshlrev_b32 v16, 10, v15"); a("v_add_u32 v14, v14, v16")
    a("v_bfe_u32 v16, v0, 4, 1"); a("v_lshlrev_b32 v16, 3, v16"); a("v_bfe_u32 v19, v0, 2, 2"); a("v_add_u32 v16, v16, v19")
    a("v_lshlrev_b32 v15, 2, v15"); a("v_xor_b32 v16, v16, v15"); a("v_lshlrev_b32 v16, 4, v16"); a("v_add_u32 v14, v14, v16")
    a("v_and_b32 v16, 1, v0"); a("v_lshlrev_b32 v16, 3, v16"); a("v_add_u32 v%d, v14, v16" % dst)
def c_dma_voffs(a, base, rows_s):
    a("v_lshrrev_b32 v14, 3, v0"); a("v_lshlrev_b32 v14, 11, v14")
    a("v_and_b32 v15, 7, v0"); a("v_lshrrev_b32 v16, 4, v0"); a("v_xor_b32 v15, v15, v16"); a("v_lshlrev_b32 v15, 4, v15")
    a("v_add_u32 v14, v14, v15"); a("v_add_u32 v14, s%d, v14" % rows_s)
    a("v_xor_b32 v15, 64, v14")
    for p in range(4): a("v_add_u32 v%d, %d, v%d" % (base + p, 8 * p * 2048 - p * 1024, 14 + (p & 1)))

def gen_P(a):
    cfg = CFG
    NP = 16 - cfg["nq"] // 2
    a.stamp(1)
    a("s_and_b32 s32, s30, 3"); a("s_lshl_b32 s32, s32, 1"); a("s_and_b32 s33, s31, 1"); a("s_add_u32 s32, s32, s33")
    a("s_lshr_b32 s33, s30, 2"); a("s_lshl_b32 s33, s33, 2"); a("s_bfe_u32 s34, s31, 0x20001"); a("s_add_u32 s33, s33, s34")
    a("s_bfe_u32 s34, s31, 0x10003")
    def acc(dt, tt): return 128 + (dt * 8 + tt) * 4
    def fa(buf, dt): return ar(buf * 48 + dt * 4, 4)
    def fb(buf, tt, half=None):
        b = buf * 48 + 16 + tt * 4
        return ar(b, 4) if half is None else ar(b + 2 * half, 2)
    a("s_cmp_eq_u32 s34, 0"); a("s_cselect_b32 s12, s68, s70"); a("s_cselect_b32 s13, s69, s71"); a("s_and_b32 s13, s13, 0xffff")
    a("s_mov_b32 s14, 2097152"); a("s_mov_b32 s15, 0x20000")
    a("s_lshl_b32 s36, s33, 7"); a("s_lshl_b32 s37, s35, 5"); a("s_add_u32 s36, s36, s37"); a("s_lshl_b32 s36, s36, 11")
    c_dma_voffs(a, 4, 36)
    a("s_lshl_b32 s76, s32, 1"); a("s_and_b32 s76, s76, 15"); a("s_lshl_b32 s77, s76, 7"); a("s_lshl_b32 s76, s76, 14")
    a("s_lshl_b32 s48, s35, 13")
    a("s_lshl_b32 s49, s35, 12"); a("s_add_u32 s49, s49, 32768")
    def dma_w(t):
        L = ["s_add_u32 m0, s49, %d" % ((t % 3) * 49152)]
        for p in range(4): L.append(("buffer_load_dwordx4 v%d, s[12:15], s77 offen offset:%d lds" % (4 + p, p * 1024), "w%d" % t))
        return L + ["s_add_u32 s77, s77, 128", "s_and_b32 s77, s77, 2047"]
    def dma_a(t):
        L = []
        for hh in range(2):
            L.append("s_add_u32 m0, s48, %d" % ((t % 3) * 49152 + hh * 4096))
            for q in range(4): L.append(("buffer_load_dwordx4 v%d, s[8:11], s76 offen offset:%d lds" % (2 + hh, q * 1024), "a%d" % t))
        return L + ["s_add_u32 s76, s76, 16384", "s_and_b32 s76, s76, 0x3ffff"]
    for t in range(2): a.emit(dma_w(t))
    a.stamp(3)
    a("s_lshl_b32 s36, s32, 20"); a("s_lshl_b32 s37, s34, 18"); a("s_add_u32 s36, s36, s37"); a("s_add_u32 s36, s36, %d" % WS_H)
    a("s_add_u32 s8, s78, s36"); a("s_addc_u32 s9, s79, 0"); a("s_and_b32 s9, s9, 0xffff"); a("s_mov_b32 s10, 0x100000"); a("s_mov_b32 s11, 0x20000")
    a("s_lshr_b32 s36, s35, 1"); a("s_lshl_b32 s36, s36, 19"); a("s_and_b32 s37, s35, 1"); a("s_lshl_b32 s37, s37, 13"); a("s_add_u32 s36, s36, s37")
    a("v_lshlrev_b32 v2, 4, v0"); a("v_add_u32 v2, s36, v2"); a("v_add_u32 v3, 4096, v2")
    c_frag_lane(a, 17); h_frag_lane(a, 18)
    a("s_and_b32 s36, s35, 1"); a("s_lshl_b32 s36, s36, 13"); a("s_add_u32 s36, s36, 32768"); a("v_add_u32 v32, s36, v17"); a("v_xor_b32 v33, 64, v32")
    a("s_lshr_b32 s36, s35, 1"); a("s_lshl_b32 s36, s36, 14"); a("v_add_u32 v34, s36, v18"); a("v_xor_b32 v35, 64, v34")
    for st in (1, 2):
        for k in range(4): a("v_add_u32 v%d, %d, v%d" % (32 + 4 * st + k, st * 49152, 32 + k))
    a("v_and_b32 v20, 15, v0"); a("s_lshl_b32 s36, s32, 8"); a("s_lshr_b32 s37, s35, 1"); a("s_lshl_b32 s37, s37, 7"); a("s_add_u32 s36, s36, s37")
    a("v_add_u32 v20, s36, v20"); a("v_lshlrev_b32 v22, 2, v20")
    a.stamp(12)
    ready_poll(a, 32, False)
    a.stamp(13)
    for t in range(2): a.emit(dma_a(t))
    G0 = 48
    late = dma_w(2) + dma_a(2) + ["s_mov_b32 s58, %d" % WS_G]
    for tt in range(8): late.append(("buffer_load_dword v%d, v22, s[64:67], s58 offen offset:%d sc1" % (G0 + tt, tt * 64), "g"))
    def reads(t, s, buf):
        st = t % 3
        A = ["ds_read_b128 %s, v%d offset:%d" % (fa(buf, dt), 32 + 4 * st + s, dt * 2048) for dt in range(4)]
        B = []
        for tt in range(8):
            for hf in range(2):
                B.append("ds_read_b64_tr_b16 %s, v%d offset:%d" % (fb(buf, tt, hf), 34 + 4 * st + hf, s * 8192 + (tt & 1) * 2048 + (tt >> 1) * 256))
        return [A[0]] + B[:2] + A[1:] + B[2:]
    def mfmas(buf, zero):
        L = []
        for tt in range(8):
            for dt in range(4):
                d = vr(acc(dt, tt), 4)
                L.append("v_mfma_f32_16x16x32_bf16 %s, %s, %s, %s" % (d, fa(buf, dt), fb(buf, tt), "0" if zero else d))
        return L
    def group(st): return dma_w(st + 3) + dma_a(st + 3) if st + 3 < NP else []
    a.wait_vm("a0", "w0")
    a("s_barrier")
    a.stamp(6)
    a.emit(reads(0, 0, 0))
    lp = Loop(a, NP, 2, mfmas, reads, group, lambda t: ("a%d" % t, "w%d" % t), stampv=31, bar_pos=cfg["bpA"], read_frac=cfg["rfA"])
    lp.pending = late
    lp.run(0, NP)
    a.stamp(7)
    a.wait_vm("g")
    a("s_lshl_b32 s58, s32, 1"); a("s_lshr_b32 s59, s35, 1"); a("s_add_u32 s58, s58, s59"); a("s_lshl_b32 s58, s58, 3"); a("s_add_u32 s58, s58, s33")
    a("s_lshl_b32 s62, s58, 7"); a("s_lshl_b32 s59, s34, 3"); a("s_add_u32 s62, s62, s59"); a("s_and_b32 s59, s35, 1"); a("s_lshl_b32 s59, s59, 2")
    a("s_add_u32 s62, s62, s59"); a("s_add_u32 s62, s62, %d" % WS_QF)
    a("s_lshl_b32 s58, s58, 15"); a("s_lshl_b32 s59, s34, 22"); a("s_add_u32 s58, s58, s59")
    a("s_and_b32 s59, s35, 1"); a("s_lshl_b32 s59, s59, 14"); a("s_add_u32 s58, s58, s59"); a("s_add_u32 s58, s58, %d" % WS_RST)
    a("v_lshlrev_b32 v2, 4, v0")
    for tt in range(8): a("v_add_f32 v%d, v%d, v%d" % (G0 + tt, G0 + tt, G0 + tt))
    for wt in range(2):
        for dp in range(2):
            for tq in range(4):
                tt = 4 * wt + tq; k = dp * 4 + tq
                o = 64 + 4 * (k & 3)
                gp = vr(G0 + (tt & ~1), 2); sel = tt & 1
                for h in range(2):
                    b = acc(2 * dp + h, tt)
                    for p in (0, 2):
                        a("v_pk_mul_f32 %s, %s, %s op_sel:[0,%d] op_sel_hi:[1,%d]" % (vr(b + p, 2), vr(b + p, 2), gp, sel, sel))
                    a("v_cvt_pk_bf16_f32 v%d, v%d, v%d" % (o + 2 * h, b, b + 1)); a("v_cvt_pk_bf16_f32 v%d, v%d, v%d" % (o + 2 * h + 1, b + 2, b + 3))
                off = wt * 8192 + k * 1024
                if off % 4096 == 0 and off: a("s_add_u32 s58, s58, 4096")
                a.v("buffer_store_dwordx4 %s, v2, s[64:67], s58 offen offset:%d sc1" % (vr(o, 4), off % 4096), "rst")
    a.stamp(8)
    a.wait_all()
    flag_store(a, "s62", 64)

def gen_Q(a):
    cfg = CFG
    NQ = cfg["nq"]; NH = NQ // 2; NP = 16 - NH
    NST = 4; X0 = NST * 32768
    steps = [("y", 0)] * NH + [("y", 1)] * NH + [("b", 0)] * 16
    if cfg["bfirst"]: steps = [("b", 0)] * 16 + [("y", 0)] * NH + [("y", 1)] * NH
    NSTEP = len(steps)
    def accy(dt, tt): return 128 + (dt * 4 + tt) * 4
    def accb(dt, tt): return 192 + (dt * 4 + tt) * 4
    def fa(buf, dt, half=None):
        b = buf * 32 + dt * 4
        return ar(b, 4) if half is None else ar(b + 2 * half, 2)
    def fb(buf, tt, half=None):
        b = buf * 32 + 16 + tt * 4
        return ar(b, 4) if half is None else ar(b + 2 * half, 2)
    a.stamp(1)
    a("s_lshl_b32 s48, s35, 12"); a("s_add_u32 s49, s48, 16384")
    a("s_and_b32 s69, s69, 0xffff"); a("s_and_b32 s71, s71, 0xffff")
    a("s_mov_b32 s12, s68"); a("s_mov_b32 s13, s69"); a("s_mov_b32 s14, 2097152"); a("s_mov_b32 s15, 0x20000")
    a("s_mov_b32 s20, s72"); a("s_and_b32 s21, s73, 0xffff"); a("s_mov_b32 s22, 2097152"); a("s_mov_b32 s23, 0x20000")
    a("s_lshl_b32 s36, s32, 19"); a("s_add_u32 s36, s36, %d" % WS_H); a("s_add_u32 s8, s78, s36"); a("s_addc_u32 s9, s79, 0"); a("s_and_b32 s9, s9, 0xffff")
    a("s_mov_b32 s10, 0x80000"); a("s_mov_b32 s11, 0x20000")
    a("s_lshl_b32 s36, s32, 18"); a("s_add_u32 s36, s36, %d" % WS_O); a("s_add_u32 s84, s78, s36"); a("s_addc_u32 s85, s79, 0"); a("s_and_b32 s85, s85, 0xffff")
    a("s_mov_b32 s86, 0x40000"); a("s_mov_b32 s87, 0x20000")
    a("v_lshlrev_b32 v3, 4, v0"); a("v_add_u32 v2, s48, v3")
    a("s_lshl_b32 s36, s33, 7"); a("s_lshl_b32 s37, s35, 5"); a("s_add_u32 s36, s36, s37"); a("s_lshl_b32 s36, s36, 11")
    c_dma_voffs(a, 4, 36)
    a("v_lshrrev_b32 v14, 4, v0"); a("v_lshlrev_b32 v15, 11, v14"); a("v_and_b32 v16, 15, v0"); a("v_lshlrev_b32 v14, 1, v14"); a("v_xor_b32 v16, v16, v14")
    a("v_lshlrev_b32 v16, 4, v16"); a("v_add_u32 v15, v15, v16")
    a("s_lshl_b32 s36, s35, 15"); a("s_lshl_b32 s37, s33, 8"); a("s_add_u32 s36, s36, s37"); a("v_add_u32 v15, s36, v15"); a("v_xor_b32 v16, 128, v15")
    for p in range(4): a("v_add_u32 v%d, %d, v%d" % (8 + p, 4 * p * 2048 - p * 1024, 15 + (p & 1)))
    a("s_and_b32 s76, s32, 14"); a("s_add_u32 s76, s76, %d" % NP); a("s_and_b32 s76, s76, 15"); a("s_lshl_b32 s77, s76, 7"); a("s_lshl_b32 s76, s76, 14")
    a("s_mov_b32 s88, s76"); a("s_mov_b32 s89, s77")
    a("s_lshl_b32 s94, s32, 14"); a("s_lshl_b32 s95, s32, 17")
    def stage(t): return t % NST
    def pre(t):
        if steps[t][0] == "y" and steps[t][1] == 1 and (t == 0 or steps[t - 1] != steps[t]):
            return ["s_mov_b32 s12, s70", "s_mov_b32 s13, s71", "s_mov_b32 s77, s89"]
        return []
    def pre_a(t):
        if steps[t][0] == "y" and steps[t][1] == 1 and (t == 0 or steps[t - 1] != steps[t]):
            return ["s_add_u32 s76, s88, 0x40000"]
        return []
    def dma_w(t):
        L = pre(t) + ["s_add_u32 m0, s49, %d" % (stage(t) * 32768)]
        if steps[t][0] == "y":
            for p in range(4): L.append(("buffer_load_dwordx4 v%d, s[12:15], s77 offen offset:%d lds" % (4 + p, p * 1024), "w%d" % t))
            return L + ["s_add_u32 s77, s77, 128", "s_and_b32 s77, s77, 2047"]
        for p in range(4): L.append(("buffer_load_dwordx4 v%d, s[20:23], s95 offen offset:%d lds" % (8 + p, p * 1024), "w%d" % t))
        return L + ["s_add_u32 s95, s95, %d" % (64 * 2048), "s_and_b32 s95, s95, 0x1fffff"]
    def dma_a(t):
        L = pre_a(t) + ["s_add_u32 m0, s48, %d" % (stage(t) * 32768)]
        if steps[t][0] == "y":
            for q in range(4): L.append(("buffer_load_dwordx4 v2, s[8:11], s76 offen offset:%d lds" % (q * 1024), "a%d" % t))
            if steps[t][1] == 0: return L + ["s_add_u32 s76, s76, 16384", "s_and_b32 s76, s76, 0x3ffff"]
            return L + ["s_add_u32 s76, s76, 16384", "s_and_b32 s76, s76, 0x3ffff", "s_or_b32 s76, s76, 0x40000"]
        for q in range(4): L.append(("buffer_load_dwordx4 v2, s[84:87], s94 offen offset:%d lds" % (q * 1024), "a%d" % t))
        return L + ["s_add_u32 s94, s94, 16384", "s_and_b32 s94, s94, 0x3ffff"]
    for t in range(NST - 1): a.emit(dma_w(t))
    a.stamp(3)
    CA, HA, WA, OA = 32, 36, 40, 48
    c_frag_lane(a, 17); h_frag_lane(a, 18)
    a("s_lshl_b32 s52, s50, 13"); a("s_add_u32 s52, s52, 16384"); a("v_add_u32 v%d, s52, v17" % CA); a("v_xor_b32 v%d, 64, v%d" % (CA + 1, CA))
    for s in range(2): a("v_add_u32 v%d, 0x10000, v%d" % (CA + 2 + s, CA + s))
    a("s_lshl_b32 s53, s51, 9"); a("v_add_u32 v%d, s53, v18" % HA); a("v_xor_b32 v%d, 64, v%d" % (HA + 1, HA))
    for s in range(2): a("v_add_u32 v%d, 0x10000, v%d" % (HA + 2 + s, HA + s))
    a("v_lshrrev_b32 v14, 4, v0"); a("v_lshlrev_b32 v15, 2, v14"); a("v_bfe_u32 v16, v0, 2, 2"); a("v_add_u32 v15, v15, v16")
    a("v_and_b32 v16, 7, v15"); a("v_lshlrev_b32 v16, 1, v16"); a("v_lshlrev_b32 v15, 8, v15")
    a("v_bfe_u32 v19, v0, 1, 1"); a("s_lshl_b32 s52, s50, 3"); a("v_add_u32 v19, s52, v19"); a("v_xor_b32 v19, v19, v16")
    a("v_lshlrev_b32 v19, 4, v19"); a("v_add_u32 v15, v15, v19"); a("v_and_b32 v19, 1, v0"); a("v_lshlrev_b32 v19, 3, v19"); a("v_add_u32 v15, v15, v19")
    a("v_add_u32 v%d, 16384, v15" % WA)
    for dt in range(1, 4): a("v_xor_b32 v%d, %d, v%d" % (WA + dt, dt * 32, WA))
    for dt in range(4): a("v_add_u32 v%d, 0x10000, v%d" % (WA + 4 + dt, WA + dt))
    a("s_lshl_b32 s53, s51, 13"); a("v_add_u32 v%d, s53, v3" % OA); a("v_add_u32 v%d, 0x10000, v%d" % (OA + 1, OA))
    def reads(t, s, buf):
        st = stage(t); so = (st & 1) * 32768; w = st >> 1
        if steps[t][0] == "y":
            A = ["ds_read_b128 %s, v%d offset:%d" % (fa(buf, dt), CA + 2 * w + s, so + dt * 2048) for dt in range(4)]
            B = []
            for tt in range(4):
                for hf in range(2):
                    B.append("ds_read_b64_tr_b16 %s, v%d offset:%d" % (fb(buf, tt, hf), HA + 2 * w + hf, so + s * 8192 + (tt & 1) * 2048 + (tt >> 1) * 256))
            return [A[0]] + B[:2] + A[1:] + B[2:]
        A = []
        for dt in range(4):
            for hf in range(2): A.append("ds_read_b64_tr_b16 %s, v%d offset:%d" % (fa(buf, dt, hf), WA + 4 * w + dt, so + s * 8192 + hf * 4096))
        B = ["ds_read_b128 %s, v%d offset:%d" % (fb(buf, tt), OA + w, so + tt * 2048 + s * 1024) for tt in range(4)]
        return [B[0]] + A + B[1:]
    firsty = min([t for t in range(NSTEP) if steps[t][0] == "y"], default=-1)
    firstb = min(t for t in range(NSTEP) if steps[t][0] == "b")
    def mfmas_t(t, s, buf):
        first = (s == 0 and t in (firsty, firstb)); L = []
        for tt in range(4):
            for dt in range(4):
                d = vr((accy if steps[t][0] == "y" else accb)(dt, tt), 4)
                L.append("v_mfma_f32_16x16x32_bf16 %s, %s, %s, %s" % (d, fa(buf, dt), fb(buf, tt), "0" if first else d))
        return L
    TL = 20
    a("v_and_b32 v%d, 15, v0" % TL); a("s_lshl_b32 s36, s32, 7"); a("s_lshl_b32 s37, s51, 6"); a("s_add_u32 s36, s36, s37"); a("v_add_u32 v%d, s36, v%d" % (TL, TL))
    a("v_lshlrev_b32 v22, 2, v%d" % TL)
    a("v_lshrrev_b32 v28, 4, v0"); a("v_lshlrev_b32 v28, 3, v28")
    a("s_lshl_b32 s36, s33, 7"); a("s_lshl_b32 s37, s50, 6"); a("s_add_u32 s36, s36, s37"); a("s_lshl_b32 s36, s36, 1"); a("v_add_u32 v28, s36, v28")
    a("s_lshr_b32 s90, s32, 1")
    G0 = 24
    side = []
    side.append("s_mov_b32 s58, %d" % WS_G)
    for tt in range(4): side.append(("buffer_load_dword v%d, v22, s[64:67], s58 offen offset:%d sc1" % (G0 + tt, tt * 64), "g"))
    a("s_mov_b32 s40, s80"); a("s_and_b32 s41, s81, 0xffff"); a("s_mov_b32 s42, 4194304"); a("s_mov_b32 s43, 0x20000")
    a("v_lshrrev_b32 v14, 4, v0"); a("v_and_b32 v15, 15, v0"); a("v_xor_b32 v15, v15, v14"); a("v_lshlrev_b32 v15, 4, v15"); a("v_lshlrev_b32 v14, 11, v14")
    a("v_add_u32 v52, v14, v15")
    for k in range(1, 4): a("v_xor_b32 v%d, %d, v52" % (52 + k, k * 64))
    a("s_lshl_b32 s16, s32, 7"); a("s_lshl_b32 s17, s35, 5"); a("s_add_u32 s16, s16, s17"); a("s_lshl_b32 s16, s16, 11")
    a("s_lshl_b32 s17, s33, 8"); a("s_add_u32 s16, s16, s17"); a("s_lshl_b32 s17, s35, 13"); a("s_add_u32 s17, s17, %d" % X0)
    for p in range(8):
        if p % 4 == 0: side.append("s_add_u32 m0, s17, %d" % ((p >> 2) * 4096))
        side.append("s_add_u32 s18, s16, %d" % (4 * p * 2048 - (p & 3) * 1024))
        side.append(("buffer_load_dwordx4 v%d, s[40:43], s18 offen offset:%d lds" % (52 + (p & 3), (p & 3) * 1024), "xt"))
    side += ["s_mov_b32 s40, s82", "s_and_b32 s41, s83, 0xffff", "s_mov_b32 s42, 2048"]
    for dt in range(4): side.append(("buffer_load_dwordx2 %s, v28, s[40:43], 0 offen offset:%d" % (vr(56 + dt * 2, 2), dt * 32), "g"))
    XA = 64
    a("v_and_b32 v14, 15, v0"); a("s_lshl_b32 s36, s51, 6"); a("v_add_u32 v15, s36, v14"); a("v_lshlrev_b32 v15, 8, v15")
    a("v_lshrrev_b32 v16, 5, v0"); a("s_lshl_b32 s36, s50, 3"); a("v_add_u32 v16, s36, v16"); a("v_xor_b32 v16, v16, v14")
    a("v_lshlrev_b32 v16, 4, v16"); a("v_add_u32 v15, v15, v16"); a("v_bfe_u32 v16, v0, 4, 1"); a("v_lshlrev_b32 v16, 3, v16"); a("v_add_u32 v15, v15, v16")
    a("v_add_u32 v%d, %d, v15" % (XA, X0))
    for dt in range(1, 4): a("v_xor_b32 v%d, %d, v%d" % (XA + dt, dt * 32, XA))
    a("s_lshl_b32 s58, s32, 3"); a("s_add_u32 s58, s58, s33")
    a("s_lshl_b32 s97, s58, 7"); a("s_lshl_b32 s36, s50, 2"); a("s_add_u32 s97, s97, s36"); a("s_add_u32 s97, s97, %d" % WS_QF)
    a("s_lshl_b32 s44, s58, 15"); a("s_lshl_b32 s36, s35, 13"); a("s_add_u32 s44, s44, s36"); a("s_add_u32 s44, s44, %d" % WS_RST)
    a("s_add_u32 s45, s44, 4096"); a("s_add_u32 s46, s44, 0x400000"); a("s_add_u32 s47, s46, 4096")
    a("v_and_b32 v51, 1, v0"); a("v_lshlrev_b32 v51, 3, v51")
    a.stamp(12)
    early_o = cfg["bfirst"] or NH * 2 < NST
    ready_poll(a, 90, early_o)
    a("s_mov_b32 s96, s38")
    a.stamp(13)
    for t in range(NST - 1): a.emit(dma_a(t))
    XR = 68
    def xreg(dt, tt): return XR + ((dt >> 1) * 4 + tt) * 4 + (dt & 1) * 2
    xr = ["ds_read_b64 %s, v%d offset:%d" % (vr(xreg(dt, tt), 2), XA + dt, tt * 4096) for dt in range(4) for tt in range(4)]
    work = []
    for dt in range(4):
        D = 100 + 4 * dt
        work += ["v_lshlrev_b32 v%d, 16, v%d" % (D, 56 + 2 * dt), "v_and_b32 v%d, 0xffff0000, v%d" % (D + 1, 56 + 2 * dt),
                 "v_lshlrev_b32 v%d, 16, v%d" % (D + 2, 57 + 2 * dt), "v_and_b32 v%d, 0xffff0000, v%d" % (D + 3, 57 + 2 * dt)]
    for dt in range(4):
        for tt in range(4):
            x = xreg(dt, tt); e = 116 + 4 * (tt & 1); D = 100 + 4 * dt
            work += ["v_lshlrev_b32 v%d, 16, v%d" % (e, x), "v_and_b32 v%d, 0xffff0000, v%d" % (e + 1, x),
                     "v_lshlrev_b32 v%d, 16, v%d" % (e + 2, x + 1), "v_and_b32 v%d, 0xffff0000, v%d" % (e + 3, x + 1)]
            work += ["v_mul_f32 v%d, v%d, v%d" % (e + r, e + r, D + r) for r in range(4)]
            work += ["v_cvt_pk_bf16_f32 v%d, v%d, v%d" % (x, e, e + 1), "v_cvt_pk_bf16_f32 v%d, v%d, v%d" % (x + 1, e + 2, e + 3)]
    first = NST + 2
    nsl = 16
    per = (len(work) + nsl - 1) // nsl
    def extra(step, s):
        k = (step - first) * 2 + s
        if k == 0: return xr
        return work[(k - 2) * per:(k - 1) * per] if k >= 2 else []
    def group(st):
        t = st + NST - 1
        return dma_w(t) + dma_a(t) if t < NSTEP else []
    def needs(t): return ("a%d" % t, "w%d" % t) + (("g", "xt") if t == NST + 1 else ())
    a.wait_vm("a0", "w0")
    a("s_barrier")
    a.stamp(6)
    a.emit(reads(0, 0, 0))
    class L2(Loop):
        def sub(self, step, s, **kw):
            self.mfmas = lambda buf, zero: mfmas_t(step, s, buf)
            Loop.sub(self, step, s, **kw)
    lp = L2(a, NSTEP, 2, None, reads, group, needs, extra=extra, stampv=31, bar_pos=cfg["bp2"], read_frac=cfg["rf2"])
    lp.pending = side
    start = 0
    if not early_o:
        TO = firstb - (NST - 1)
        lp.run(0, TO); lp.sub(TO, 0)
        def hook_o():
            a.stamp(9)
            poll_tags(a, ["buffer_load_dword v50, v23, s[64:67], s96 offen sc1"], [50], 29)
            a.stamp(10)
        lp.sub(TO, 1, hook=hook_o)
        start = TO + 1
    lp.run(start, NSTEP - 1)
    lp.pending = lp.pending + [("buffer_load_dword v50, v51, s[64:67], s97 offen sc1", "qf")]
    lp.run(NSTEP - 1, NSTEP)
    a.wait_vm("qf")
    a("v_cmp_ne_u32 vcc, s91, v50")
    Lok = a.newlabel("Lq_ok")
    a("s_cbranch_vccz %s" % Lok)
    poll_tags(a, ["buffer_load_dword v50, v51, s[64:67], s97 offen sc1"], [50], 29)
    a.label(Lok)
    a.vm = []
    RA = [32 + 4 * k for k in range(8)]
    RB = [4 * k for k in range(8)]
    for k in range(8): a.v("buffer_load_dwordx4 %s, v3, s[64:67], s%d offen offset:%d sc1" % (ar(RA[k], 4), 44 + (k >> 2), (k & 3) * 1024), "rst")
    for k in range(8): a.v("buffer_load_dwordx4 %s, v3, s[64:67], s%d offen offset:%d sc1" % (ar(RB[k], 4), 46 + (k >> 2), (k & 3) * 1024), "rst")
    a.stamp(7)
    Le = a.newlabel("Lq_noep")
    a("s_cmp_lg_u32 s32, 15"); a("s_cbranch_scc1 %s" % Le)
    a("s_or_b32 s36, s33, s35"); a("s_cmp_lg_u32 s36, 0"); a("s_cbranch_scc1 %s" % Le)
    a("s_mov_b32 s36, %d" % WS_EP)
    flag_store(a, "s36", 12)
    a.label(Le)
    a("s_mov_b32 s84, s74"); a("s_and_b32 s85, s75, 0xffff"); a("s_mov_b32 s86, 8388608"); a("s_mov_b32 s87, 0x20000")
    a("v_lshlrev_b32 v23, 12, v%d" % TL); a("v_lshlrev_b32 v28, 1, v28"); a("v_add_u32 v23, v23, v28")
    a("v_and_b32 v12, 15, v0"); a("v_lshrrev_b32 v13, 2, v12"); a("v_lshrrev_b32 v14, 4, v0")
    a("v_cmp_eq_u32 vcc, v13, v14")
    a("v_and_b32 v13, 1, v12"); a("v_lshlrev_b32 v13, 4, v13")
    a("v_mov_b32 v15, 0x3f80"); a("v_lshlrev_b32 v15, v13, v15"); a("v_cndmask_b32 v15, 0, v15, vcc")
    a("v_mov_b32 v16, 0x3f00"); a("v_lshlrev_b32 v16, v13, v16"); a("v_cndmask_b32 v16, 0, v16, vcc")
    a("v_and_b32 v13, 2, v12"); a("v_cmp_eq_u32 vcc, 0, v13")
    for r in (116, 117, 120, 121, 122, 123, 126, 127): a("v_mov_b32 v%d, 0" % r)
    a("s_nop 0"); a("v_cndmask_b32 v118, 0, v15, vcc")
    a("v_mov_b32 v17, 0")
    a("v_cndmask_b32 v119, v15, v17, vcc")
    a("v_cndmask_b32 v124, 0, v16, vcc"); a("v_cndmask_b32 v125, v16, v17, vcc")
    SEL1 = [vr(118, 4), vr(116, 4)]
    SELH = [vr(124, 4), vr(122, 4)]
    for tt in range(4): a("v_sub_f32 v%d, 1.0, v%d" % (16 + tt, G0 + tt))
    a("v_cvt_pk_bf16_f32 v12, v16, v17"); a("v_cvt_pk_bf16_f32 v13, v18, v19")
    a("v_lshlrev_b32 v16, 16, v12"); a("v_and_b32 v17, 0xffff0000, v12"); a("v_lshlrev_b32 v18, 16, v13"); a("v_and_b32 v19, 0xffff0000, v13")
    for tt in range(4): a("v_add_f32 v%d, v%d, v%d" % (4 + tt, G0 + tt, G0 + tt))
    for tt in range(4): a("s_mov_b32 s%d, %d" % (92 + tt, tt * 16 * 4096))
    for dp in range(2):
        for tt in range(4):
            for h in range(2):
                y = vr(accy(2 * dp + h, tt), 4)
                a("v_mfma_f32_16x16x32_bf16 %s, %s, %s, %s" % (y, SELH[h], vr(XR + (dp * 4 + tt) * 4, 4), y if NQ > 0 else "0"))
    for dp in range(2):
        for tt in range(4):
            op = vr(16 + (tt & ~1), 2); sel = tt & 1
            dst = accb(2 * dp, tt)
            for h in range(2):
                b = accb(2 * dp + h, tt)
                a("v_cvt_pk_bf16_f32 v12, v%d, v%d" % (b, b + 1)); a("v_cvt_pk_bf16_f32 v13, v%d, v%d" % (b + 2, b + 3))
                a("v_lshlrev_b32 v%d, 16, v12" % b); a("v_and_b32 v%d, 0xffff0000, v12" % (b + 1))
                a("v_lshlrev_b32 v%d, 16, v13" % (b + 2)); a("v_and_b32 v%d, 0xffff0000, v13" % (b + 3))
                for p in (0, 2): a("v_pk_mul_f32 %s, %s, %s op_sel:[0,%d] op_sel_hi:[1,%d]" % (vr(b + p, 2), vr(b + p, 2), op, sel, sel))
                a("v_cvt_pk_bf16_f32 v%d, v%d, v%d" % (dst + 2 * h, b, b + 1)); a("v_cvt_pk_bf16_f32 v%d, v%d, v%d" % (dst + 2 * h + 1, b + 2, b + 3))
    for dt in range(4):
        for tt in range(4):
            y = accy(dt, tt); gp = vr(4 + (tt & ~1), 2); sel = tt & 1
            for p in (0, 2): a("v_pk_mul_f32 %s, %s, %s op_sel:[0,%d] op_sel_hi:[1,%d]" % (vr(y + p, 2), vr(y + p, 2), gp, sel, sel))
    a("s_nop 1")
    for dp in range(2):
        for tt in range(4):
            for h in range(2):
                y = vr(accy(2 * dp + h, tt), 4)
                a("v_mfma_f32_16x16x32_bf16 %s, %s, %s, %s" % (y, SEL1[h], vr(accb(2 * dp, tt), 4), y))
    a.wait_all()
    a.stamp(8)
    for R in (RA, RB):
        for dp in range(2):
            for tt in range(4):
                for h in range(2):
                    y = vr(accy(2 * dp + h, tt), 4)
                    a("v_mfma_f32_16x16x32_bf16 %s, %s, %s, %s" % (y, SEL1[h], ar(R[dp * 4 + tt], 4), y))
    a("s_nop 7"); a("s_nop 3")
    for dp in range(2):
        for tt in range(4):
            for h in range(2):
                dt = 2 * dp + h
                a.v("buffer_store_dwordx4 %s, v23, s[84:87], s%d offen offset:%d%s" % (vr(accy(dt, tt), 4), 92 + tt, dt * 64, cfg["outpol"]), "out")
```

```python
import sys
from lib import *
import stage1, stage1u, stage1b2
import stage2b as stage2
import stage2c
cfg = dict(round_qk=False, round_num=False, sleep=2, pf=False, pfw=True, pfc=True, pfall=0, late2=False, rot=True, rmask=1, rmul=1, tlb=False, pfstep=4, uni=0, b2=0, bq2=1, pfat=-1, bfirst=0, pfe=0, pfb=0, p256=0, hoist=1, nbA=3, defq=0, bpU=0, rfU=0.6, nq=6, bpA=6, bpB=8, bp2=3, rfA=0.6, rfB=0.6, rf2=0.6, outpol='sc1', stamp=False)
for arg in sys.argv[2:]:
    k, v = arg.split("=")
    cfg[k] = int(v) if v.isdigit() else (float(v) if v.replace('.', '').isdigit() else v)
cfg['outpol'] = {'': '', 0: '', 'sc1': ' sc1', 'nt': ' nt', 'sys': ' sc0 sc1', 'sc1nt': ' sc1 nt'}[cfg['outpol']]
stage1.CFG.update(cfg)
a = Asm()
a.stamp_on = bool(cfg["stamp"])
a.step_stamps = cfg["stamp"] == 2
nm = NAME + "_kernel"
LDS = 163840
a.launches.append("; @launch grid=(256,1,1) block=(256,1,1) lds=%d" % LDS)
a.start_kernel(nm)
a("s_cmp_ge_u32 s2, 256")
a("s_cbranch_scc1 Lend")
if a.stamp_on: a("s_memrealtime s[40:41]")
a("s_load_dwordx2 s[8:9], s[0:1], 0")
a("s_load_dwordx4 s[68:71], s[0:1], 24")
a("s_load_dwordx2 s[72:73], s[0:1], 80")
a("s_load_dwordx4 s[76:79], s[0:1], 112")
a("s_load_dwordx2 s[88:89], s[0:1], 96")
a("s_load_dwordx2 s[92:93], s[0:1], 8")
a("s_load_dwordx2 s[94:95], s[0:1], 16")
a("s_load_dwordx2 s[96:97], s[0:1], 56")
a("s_load_dwordx4 s[44:47], s[0:1], 40")
a("s_load_dwordx2 s[74:75], s[0:1], 88")
a("s_load_dwordx2 s[82:83], s[0:1], 104")
a("s_and_b32 s30, s2, 7")
a("s_lshr_b32 s31, s2, 3")
a("s_and_b32 s32, s30, 1")
a("s_lshl_b32 s32, s32, 2")
a("s_and_b32 s33, s31, 3")
a("s_add_u32 s32, s32, s33")
a("s_lshr_b32 s33, s30, 1")
if cfg["uni"]:
    a("s_lshl_b32 s33, s33, 3")
    a("s_lshr_b32 s34, s31, 2")
else:
    a("s_lshl_b32 s33, s33, 2")
    a("s_bfe_u32 s34, s31, 0x20002")
a("s_add_u32 s33, s33, s34")
a("v_lshrrev_b32 v1, 6, v0")
a("v_and_b32 v0, 63, v0")
a("v_readfirstlane_b32 s35, v1")
a("s_mov_b32 s10, 4194304")
a("s_mov_b32 s11, 0x20000")
a("s_mov_b32 s66, %d" % WS_SIZE_USED)
a("s_mov_b32 s67, 0x20000")
a("s_lshr_b32 s50, s35, 1")
a("s_and_b32 s51, s35, 1")
def ptr_setup(a):
    a("s_waitcnt lgkmcnt(0)")
    a("s_and_b32 s9, s9, 0xffff")
    a("s_mov_b32 s60, s68"); a("s_mov_b32 s61, s69"); a("s_mov_b32 s62, s70"); a("s_mov_b32 s63, s71")
    a("s_mov_b32 s64, s78")
    a("s_and_b32 s65, s79, 0xffff")
    a("s_mov_b32 s36, %d" % WS_EP)
    a("s_load_dword s91, s[78:79], s36")
    if a.stamp_on: a("v_writelane_b32 v1, s40, 0")
    a.stamp(14)
stage1.PTR_SETUP = ptr_setup
EARLY = not (cfg["uni"] or cfg["b2"] or cfg["pfall"])
if not EARLY:
    ptr_setup(a)
    stage1.PTR_SETUP = lambda a: None
if cfg["pfall"]:
    a("s_lshl_b32 s36, s2, 2"); a("s_add_u32 s36, s36, s35")
    a("v_lshlrev_b32 v2, 7, v0")
    a("s_mov_b32 s87, 0x20000")
    a("s_and_b32 s37, s36, 255"); a("s_lshl_b32 s37, s37, 13")
    a("s_lshl_b32 s38, s36, 13")
    a("s_cmp_lt_u32 s36, 768")
    a("s_cselect_b32 s84, s72, s44"); a("s_cselect_b32 s85, s73, s45"); a("s_cselect_b32 s39, s38, s37")
    a("s_and_b32 s85, s85, 0xffff"); a("s_mov_b32 s86, 6291456")
    a("buffer_load_dword v21, v2, s[84:87], s39 offen")
    a("s_cmp_lt_u32 s36, 768")
    a("s_cselect_b32 s84, s68, s70"); a("s_cselect_b32 s85, s69, s71")
    a("s_cmp_lt_u32 s36, 512")
    a("s_cselect_b32 s84, s8, s84"); a("s_cselect_b32 s85, s9, s85"); a("s_cselect_b32 s39, s38, s37")
    a("s_and_b32 s85, s85, 0xffff"); a("s_mov_b32 s86, 4194304")
    a("buffer_load_dword v21, v2, s[84:87], s39 offen")
    if cfg["pfall"] >= 2:
        a("s_cmp_lt_u32 s36, 512")
        a("s_cbranch_scc0 Lnopf3")
        a("s_cmp_lt_u32 s36, 256")
        a("s_cselect_b32 s84, s46, s74"); a("s_cselect_b32 s85, s47, s75")
        a("s_and_b32 s85, s85, 0xffff"); a("s_mov_b32 s86, 2097152")
        a("buffer_load_dword v21, v2, s[84:87], s37 offen")
        a.label("Lnopf3")
if cfg["pfc"]:
    a("s_getpc_b64 s[84:85]")
    a.label("Lpc")
    a("s_and_b32 s85, s85, 0xffff")
    a("s_mov_b32 s100, s84"); a("s_mov_b32 s101, s85")
    a("s_mov_b32 s86, Lcode_end-Lpc")
    a("s_mov_b32 s87, 0x20000")
    a("s_lshl_b32 s36, s31, 2"); a("s_add_u32 s36, s36, s35"); a("s_lshl_b32 s36, s36, 13")
    a("v_lshlrev_b32 v2, 7, v0")
    a("s_cmp_lt_u32 s36, s86")
    a("s_cbranch_scc0 Lnopfc")
    a("buffer_load_dword v21, v2, s[84:87], s36 offen")
    a.label("Lnopfc")
if not cfg["uni"]:
    a("s_cmp_ge_u32 s31, 16")
    a("s_cbranch_scc1 L_B")

def stage2_ptrs(a):
    a("s_load_dwordx4 s[68:71], s[0:1], 40")
    a("s_load_dwordx2 s[72:73], s[0:1], 88")
    a("s_load_dwordx2 s[74:75], s[0:1], 104")
    a("s_load_dwordx2 s[80:81], s[0:1], 0")
    a("s_load_dwordx2 s[82:83], s[0:1], 64")
stage1.STAGE2_PTRS = stage2_ptrs if cfg["hoist"] else (lambda a: None)

def transition(a):
    if not cfg["hoist"]: stage2_ptrs(a)
    a("s_and_b32 s32, s30, 1"); a("s_lshl_b32 s32, s32, 3")
    a("s_bfe_u32 s33, s30, 0x10001"); a("s_lshl_b32 s33, s33, 2"); a("s_add_u32 s32, s32, s33")
    a("s_and_b32 s33, s31, 3"); a("s_add_u32 s32, s32, s33")
    a("s_lshr_b32 s33, s30, 2"); a("s_lshl_b32 s33, s33, 2")
    a("s_bfe_u32 s34, s31, 0x20002"); a("s_add_u32 s33, s33, s34")
    a("s_waitcnt lgkmcnt(0)")
    a("s_barrier")

def finish(a, v2):
    if not a.stamp_on: return
    a("s_waitcnt vmcnt(0)")
    a.stamp(15, vreg=v2)
    a("s_lshl_b32 s98, s2, 2"); a("s_add_u32 s98, s98, s35"); a("s_lshl_b32 s98, s98, 9"); a("s_add_u32 s98, s98, %d" % WS_STAMP)
    a("v_lshlrev_b32 v0, 2, v0")
    a("v_cmp_gt_u32 vcc, 128, v0"); a("s_and_saveexec_b64 s[60:61], vcc")
    a("v_accvgpr_read_b32 v3, a121"); a("v_accvgpr_read_b32 v4, a120")
    a("buffer_store_dword v3, v0, s[64:67], s98 offen")
    a("buffer_store_dword v1, v0, s[64:67], s98 offen offset:128")
    a("buffer_store_dword v4, v0, s[64:67], s98 offen offset:256")
    a("buffer_store_dword v31, v0, s[64:67], s98 offen offset:384")
    a("s_mov_b64 exec, s[60:61]")

if cfg["uni"]:
    stage1u.gen_U(a)
    if a.stamp_on: a("v_accvgpr_write_b32 a121, v1")
    transition(a)
    a.vm = []
    a("s_cmp_ge_u32 s31, 16")
    a("s_cbranch_scc1 L_Q")
    stage2.gen_PQ(a, True)
    finish(a, 1)
    a("s_endpgm")
    a.label("L_Q")
    a.vm = []
    stage2.gen_PQ(a, False)
    finish(a, 1)
else:
    stage1.gen_A(a)
    if a.stamp_on: a("v_accvgpr_write_b32 a121, v1")
    transition(a)
    a.vm = []
    if cfg["p256"]: stage2c.gen_P(a)
    else: stage2.gen_PQ(a, True)
    finish(a, 1)
    a("s_endpgm")
    a.label("L_B")
    a.vm = []
    (stage1b2.gen_B2 if cfg['b2'] else stage1.gen_B)(a)
    if a.stamp_on: a("v_accvgpr_write_b32 a121, v1")
    transition(a)
    a.vm = []
    if cfg["p256"]: stage2c.gen_Q(a)
    else: stage2.gen_PQ(a, False)
    finish(a, 1)
a.label("Lend")
a("s_endpgm")
a.label("Lcode_end")
a.kd(nm, 256, 128 if a.stamp_on else 112)
open(sys.argv[1], "w").write(a.text())
```
